```python
import torch

def _softmax(x, axis=-1):
    return torch.softmax(x, dim=axis)
def _gelu(x):
    return torch.nn.functional.gelu(x, approximate="tanh")
def _silu(x):
    return torch.nn.functional.silu(x)
def _sigmoid(x):
    return torch.sigmoid(x)
def _layernorm(x, axis=-1, eps=1e-5):
    m = x.mean(dim=axis, keepdim=True)
    v = x.var(dim=axis, keepdim=True, unbiased=False)
    return (x - m) / torch.sqrt(v + eps)
def _scatter_add(tgt, idx, src, axis=0):
    return tgt.clone().index_add_(axis, idx, src)
def _segment_sum(src, seg, n):
    out = torch.zeros((n,) + src.shape[1:], dtype=src.dtype)
    return out.index_add_(0, seg, src)
def _pad(x, pw):
    flat = tuple(v for pair in reversed(pw) for v in pair)
    return torch.nn.functional.pad(x, flat)

kernel_name = 'sequential_preLN__sliding_block__glu_gated_reglu__prompt'

def setup_inputs():

    _w = (lambda a: (lambda t: t.to(torch.bfloat16) if t.is_floating_point() else t)(torch.as_tensor(a)))
    def _A_setup():
        B, S, D = 1, 2048, 640
        return {
            "x": _w((lambda *s: torch.randn(*s, dtype=torch.bfloat16) * 0.05)(B, S, D)),
            "wqkv": _w((lambda *s: torch.randn(*s, dtype=torch.bfloat16) * 0.05)(D, 3 * D)),
            "wo": _w((lambda *s: torch.randn(*s, dtype=torch.bfloat16) * 0.05)(D, D)),
        }
    _A_in = _A_setup()

    def _B_setup():
        B, S, D, F = 1, 2048, 640, 1728
        return {
            "x": _w((lambda *s: torch.randn(*s, dtype=torch.bfloat16) * 0.05)(B, S, D)),
            "W_gate": _w((lambda *s: torch.randn(*s, dtype=torch.bfloat16) * 0.8)(D, F) * (2.0 / D) ** 0.5),
            "W_up": _w((lambda *s: torch.randn(*s, dtype=torch.bfloat16) * 0.8)(D, F) * (2.0 / D) ** 0.5),
            "W_down": _w((lambda *s: torch.randn(*s, dtype=torch.bfloat16) * 0.8)(F, D) * (1.0 / F) ** 0.5),
        }
    _B_in = _B_setup()

    return {
        "A_x": _A_in["x"],
        "A_wqkv": _A_in["wqkv"],
        "A_wo": _A_in["wo"],
        "B_x": _B_in["x"],
        "B_W_gate": _B_in["W_gate"],
        "B_W_up": _B_in["W_up"],
        "B_W_down": _B_in["W_down"],
    }

def reference(A_x, A_wqkv, A_wo, B_x, B_W_gate, B_W_up, B_W_down):
    def _A_ref(x, wqkv, wo):
        B, S, D = x.shape
        H = 32; Dh = D // H; W = 256
        qkv = (lambda x, *d: x.permute(*d))((x @ wqkv).reshape(B, S, 3, H, Dh), 2, 0, 3, 1, 4)
        q, k, v = qkv[0], qkv[1], qkv[2]
        scores = torch.einsum("bhqd,bhkd->bhqk", q, k) * (Dh ** -0.5)
        idx = torch.arange(S)
        mask = (idx[:, None] - idx[None, :] >= 0) & (idx[:, None] - idx[None, :] < W)
        scores = torch.where(mask[None, None], scores, -1e9)
        p = _softmax(scores, axis=-1)
        o = torch.einsum("bhqk,bhkd->bhqd", p, v)
        return (lambda x, *d: x.permute(*d))(o, 0, 2, 1, 3).reshape(B, S, D) @ wo

    def _B_ref(x, W_gate, W_up, W_down):
        gate = torch.einsum("bsd,df->bsf", x, W_gate)
        up = torch.einsum("bsd,df->bsf", x, W_up)
        gate = gate * (lambda x, dt: x.to(dt))(gate > 0, gate.dtype)
        h = gate * up
        return torch.einsum("bsf,fd->bsd", h, W_down)

    x = A_x
    h = x + _A_ref(_layernorm(x, axis=-1), A_wqkv, A_wo)
    h2 = h + _B_ref(_layernorm(h, axis=-1), B_W_gate, B_W_up, B_W_down)
    return h2
```

```python
class Asm:
    def __init__(self):
        self.lines = []
        self.launches = []
        self.kernels = []
        self._lab = 0
    def e(self, s):
        for ln in s.split("\n"):
            ln = ln.strip()
            if ln:
                self.lines.append("    " + ln if not ln.endswith(":") else ln)
    def label(self, base="L"):
        self._lab += 1
        return f"{base}_{self._lab}"
    def begin_kernel(self, name):
        self.lines.append(f".globl {name}\n.p2align 8\n.type {name},@function\n{name}:")
    def end_kernel(self, name, vgpr, sgpr=102, accum=None):
        if accum is None:
            accum = (min(vgpr, 256) + 3) // 4 * 4
        self.kernels.append((name, vgpr, sgpr, accum))
    def launch(self, name, grid, block, lds):
        self.launches.append(f"; @launch kernel={name} grid=({grid},1,1) block=({block},1,1) lds={lds}")
    def text(self, header=""):
        out = []
        if header:
            out.append(header)
        out += self.launches
        out.append('.amdgcn_target "amdgcn-amd-amdhsa--gfx950"\n.text')
        out += self.lines
        out.append('.section .rodata,"a"')
        for (n, v, s, a) in self.kernels:
            out.append(f""".p2align 6
.amdhsa_kernel {n}
  .amdhsa_next_free_vgpr {v}
  .amdhsa_next_free_sgpr {s}
  .amdhsa_accum_offset {a}
  .amdhsa_group_segment_fixed_size 0
  .amdhsa_kernarg_size 80
  .amdhsa_user_sgpr_count 2
  .amdhsa_user_sgpr_kernarg_segment_ptr 1
  .amdhsa_system_sgpr_workgroup_id_x 1
.end_amdhsa_kernel""")
        return "\n".join(out) + "\n"

def srd(a, d, b, nbytes):
    a.e(f"""s_mov_b32 s{d}, s{b}
    s_and_b32 s{d+1}, s{b+1}, 0xffff
    s_mov_b32 s{d+2}, {nbytes}
    s_mov_b32 s{d+3}, 0x20000""")
```

```python
from asmlib import *
import struct
T = 2048; D = 640; F = 1728
QKV_OFF = 0;                    QKV_BLK = 240 * 1024
O_OFF   = 8 << 20;              O_BLK = 80 * 1024
H_OFF   = 11 << 20;             H_BLK = 80 * 1024
ACT_OFF = 14 << 20;             ACT_BLK = 216 * 1024
STAT_OFF = 22 << 20
WO_OFF  = 23 << 20
WD_OFF  = 24 << 20
WGU_OFF = 27 << 20
STAMP_OFF = 40 << 20
WS_BYTES = 64 << 20
def f32bits(x):
    return struct.unpack("<I", struct.pack("<f", x))[0]
def interleave(main, fill, lead=1):
    out = []
    n = len(main)
    k = 0
    for i, m in enumerate(main):
        out.append(m)
        tgt = ((i + 1) * len(fill) + n - 1) // n
        while k < tgt:
            out.append(fill[k]); k += 1
    return out
def stamp(a, idx, on):
    if on:
        a.e(f"s_memtime s[{80+2*idx}:{81+2*idx}]")
        if idx == 0:
            a.e("s_memrealtime s[96:97]")
def stamp_flush(a, on, nst, srdreg, kidx, lab):
    if not on: return
    a.e(f"""
    s_memrealtime s[98:99]
    s_waitcnt lgkmcnt(0)
    v_cmp_eq_u32 vcc, 0, v0
    s_and_saveexec_b64 s[78:79], vcc
    s_cbranch_execz {lab}
    s_lshl_b32 s77, s2, 7
    s_add_u32 s77, s77, {STAMP_OFF + kidx * 65536}
    v_mov_b32 v1, 0
    """)
    for q in list(range(nst)) + [8, 9]:
        a.e(f"""v_mov_b32 v2, s{80+2*q}
        v_mov_b32 v3, s{81+2*q}
        buffer_store_dwordx2 v[2:3], v1, s[{srdreg}:{srdreg+3}], s77 offen offset:{8*q}
        s_nop 1""")
GU_SLICE = 21 * 14 * 1024
CORR_POS = 8
def gu_si(ks):
    return ks if ks < CORR_POS else ks + 1
```

```python
from common import *
import math
def gen_k1(a, name="k1_kernel", NS=4, stamps=False, kidx=0, P=2, rate0=2, statmask=15, statpos=0):
    a.begin_kernel(name)
    L_end = f"{name}_end"
    stamp(a, 0, stamps)
    a.e(f"""
    s_cmp_ge_u32 s2, 256
    s_cbranch_scc1 {L_end}
    s_load_dwordx4 s[4:7], s[0:1], 0
    s_load_dwordx2 s[24:25], s[0:1], 72
    v_lshrrev_b32 v1, 6, v0
    v_and_b32 v2, 63, v0                 ; lane
    s_and_b32 s26, s2, 7                 ; xcd
    s_lshr_b32 s27, s2, 3                ; r
    v_readfirstlane_b32 s28, v1          ; wave
    s_lshr_b32 s29, s26, 1               ; i
    s_and_b32 s30, s26, 1                ; j
    s_and_b32 s31, s27, 3                ; m
    s_lshr_b32 s32, s27, 2               ; cg
    s_lshl_b32 s33, s29, 9
    s_lshl_b32 s34, s31, 7
    s_add_u32 s33, s33, s34              ; tok0
    s_lshr_b32 s35, s28, 1
    s_and_b32 s36, s28, 1
    """)
    def colcalc(sel, dst, tdst):
        a.e(f"""
        s_lshl_b32 s37, s32, 1
        s_add_u32 s37, s37, s{sel}
        s_min_u32 s37, s37, 14
        s_mul_i32 s{tdst}, s37, 52
        s_lshr_b32 s{tdst}, s{tdst}, 8
        s_add_u32 s{dst}, s{tdst}, s30
        s_mul_i32 s{dst}, s{dst}, 320
        s_lshl_b32 s37, s37, 6
        s_add_u32 s{dst}, s{dst}, s37
        """)
    colcalc(35, 38, 39)
    colcalc(36, 40, 41)
    a.e(f"""
    s_mul_i32 s42, s31, 5
    s_lshr_b32 s42, s42, 1
    s_add_u32 s42, s42, s32              ; 0..14
    s_cmp_ge_u32 s42, 10
    s_cselect_b32 s43, 10, 0
    s_sub_u32 s42, s42, s43
    s_lshl_b32 s43, s28, 5
    s_add_u32 s43, s43, s33
    s_mul_i32 s43, s43, 1280
    s_lshl_b32 s44, s42, 7               ; kc*128
    s_mul_i32 s45, s36, {32*3840}
    s_lshl_b32 s46, s38, 1
    s_add_u32 s45, s45, s46
    s_mul_i32 s46, s42, {64*3840}        ; kc*245760
    s_lshl_b32 s47, s28, 12
    """)
    a.e("""
    v_lshrrev_b32 v3, 3, v2              ; rho
    v_and_b32 v12, 7, v2                 ; sigma
    v_lshrrev_b32 v13, 1, v3             ; rho>>1 (0..3)
    v_xor_b32 v14, v12, v13
    v_xor_b32 v15, 4, v14
    v_mul_u32_u24 v16, 1280, v3
    v_lshl_add_u32 v4, v14, 4, v16
    v_lshl_add_u32 v5, v15, 4, v16
    """)
    a.e(f"""
    v_add_u32 v6, {2*(8*1280-1024)}, v4
    v_add_u32 v7, {3*(8*1280-1024)}, v5
    v_add_u32 v5, {1*(8*1280-1024)}, v5
    v_and_b32 v13, 1, v13
    v_lshlrev_b32 v13, 2, v13
    v_xor_b32 v14, v12, v13
    v_mul_u32_u24 v16, 3840, v3
    v_lshl_add_u32 v8, v14, 4, v16
    v_add_u32 v9, {1*(8*3840-1024)}, v8
    v_add_u32 v10, {2*(8*3840-1024)}, v8
    v_add_u32 v11, {3*(8*3840-1024)}, v8
    s_waitcnt lgkmcnt(0)
    """)
    srd(a, 8, 4, T * D * 2)
    srd(a, 12, 6, D * 1920 * 2)
    srd(a, 16, 24, WS_BYTES)
    stamp(a, 1, stamps)
    def dma(n):
        slot = (n % NS) * 32768
        out = []
        out.append(f"s_add_u32 m0, s47, {slot}\ns_add_u32 s48, s43, s44")
        for q in range(4):
            out.append(f"buffer_load_dwordx4 v{4+q}, s[8:11], s48 offen offset:{1024*q} lds")
        out.append(f"s_add_u32 m0, s47, {slot+16384}\ns_add_u32 s49, s45, s46")
        for q in range(4):
            out.append(f"buffer_load_dwordx4 v{8+q}, s[12:15], s49 offen offset:{1024*q} lds")
        out.append(f"""s_add_u32 s44, s44, 128
        s_add_u32 s46, s46, {64*3840}
        s_cmp_ge_u32 s44, 1280
        s_cselect_b32 s44, 0, s44
        s_cselect_b32 s46, 0, s46""")
        return out
    def dma_items(n):
        d = dma(n)
        return [d[0] + "\n" + d[1], d[2], d[3], d[4], d[5] + "\n" + d[6], d[7], d[8], d[9] + "\n" + d[10]]
    items = []
    for n in range(10): items += dma_items(n)
    issued = [0]
    def take(k, maxstage):
        out = []
        while k > 0 and issued[0] < 80 and issued[0] // 8 <= maxstage:
            out.append(items[issued[0]]); issued[0] += 1; k -= 1
        return out
    for x in take(8 * P, NS - 1): a.e(x)
    a.e(f"""
    v_and_b32 v12, 31, v2                ; tau
    v_lshrrev_b32 v13, 5, v2             ; g
    v_lshrrev_b32 v14, 1, v12
    v_and_b32 v14, 7, v14                ; f
    v_xor_b32 v14, v14, v13              ; g^f
    s_lshl_b32 s50, s35, 13              ; wt*64*128
    s_lshl_b32 s51, s36, 12              ; wf*4096
    s_add_u32 s52, s50, s51
    s_xor_b32 s51, s51, 4096
    s_add_u32 s53, s50, s51
    v_lshlrev_b32 v15, 7, v12            ; tau*128
    """)
    for sp in range(4):
        a.e(f"""v_xor_b32 v16, {2*sp}, v14
        v_lshl_add_u32 v16, v16, 4, v15
        v_add_u32 v{20+sp}, s52, v16
        v_add_u32 v{24+sp}, s53, v16""")
    a.e(f"""
    v_bfe_u32 v14, v2, 2, 2              ; r
    v_and_b32 v15, 3, v2                 ; c'
    v_bfe_u32 v16, v2, 4, 1              ; G&1
    v_lshl_add_u32 v17, v13, 3, v14      ; 8g + r
    v_lshlrev_b32 v17, 7, v17            ; *128
    v_lshl_add_u32 v17, v16, 5, v17      ; + (G&1)*32
    v_and_b32 v18, 1, v15
    v_lshl_add_u32 v17, v18, 4, v17      ; + (c'&1)*16
    v_lshrrev_b32 v18, 1, v15
    v_lshl_add_u32 v17, v18, 3, v17      ; + (c'>>1)*8
    s_lshl_b32 s50, s36, 13              ; wf*8192
    v_add_u32 v17, s50, v17
    v_lshrrev_b32 v18, 1, v14            ; r>>1
    v_xor_b32 v18, s35, v18
    v_lshl_add_u32 v28, v18, 6, v17
    v_xor_b32 v18, 1, v18
    v_lshl_add_u32 v29, v18, 6, v17
    v_bfe_u32 v14, v2, 2, 1
    v_bfe_u32 v15, v2, 4, 1
    v_xor_b32 v14, v14, v15
    v_subrev_u32 v14, 1, v14             ; 0 -> 0xffffffff ; 1 -> 0
    v_and_b32 v172, 0x3f803f80, v14
    v_mov_b32 v173, v172
    v_mov_b32 v174, v172
    v_mov_b32 v175, v172
    """)
    ACC = 64
    def acc(fs, ts): return ACC + 16 * (2 * fs + ts)
    for r in list(range(64, 128)) + list(range(160, 172)) + list(range(176, 180)):
        a.e(f"v_mov_b32 v{r}, 0")
    def xf(st, ts): return 128 + 16 * st + 4 * ts
    def wf_(st, fs): return 128 + 16 * st + 8 + 4 * fs
    cur_pair = [0]
    def reads(gs):
        n, sp = divmod(gs, 4)
        slot = n % NS
        out = []
        if slot >> 1 != cur_pair[0]:
            d = ((slot >> 1) - cur_pair[0]) * 65536
            cur_pair[0] = slot >> 1
            for r in range(20, 30):
                if d > 0: out.append(f"v_add_u32 v{r}, {d}, v{r}")
                else: out.append(f"v_subrev_u32 v{r}, {-d}, v{r}")
        so = (slot & 1) * 32768
        st = gs & 1
        for q in range(2):
            r = xf(st, q)
            out.append(f"ds_read_b128 v[{r}:{r+3}], v{20+4*q+sp} offset:{so}")
            r = wf_(st, q)
            for hf in range(2):
                out.append(f"ds_read_b64_tr_b16 v[{r+2*hf}:{r+2*hf+1}], v{28+q} offset:{so+16384+(16*sp+4*hf)*128}")
        return out
    a.e(f"s_waitcnt vmcnt({issued[0]-8})\ns_barrier")
    stamp(a, 2, stamps)
    for x in reads(0): a.e(x)
    for n in range(10):
        for sp in range(4):
            gs = 4 * n + sp
            st = gs & 1
            a.e("s_waitcnt lgkmcnt(0)")
            fill = []
            if sp == 3 and n < 9:
                assert issued[0] >= 8 * (n + 2)
                K = issued[0] - 8 * (n + 2)
                a.e(f"s_waitcnt vmcnt({K})\ns_barrier")
            if gs < 39: fill += reads(gs + 1)
            fill += take(rate0, n + NS - 1 + (1 if sp == 3 else 0))
            main = []
            x0 = xf(st, 0)
            def mm(fs, ts):
                c = acc(fs, ts); w = wf_(st, fs); x = xf(st, ts)
                return f"v_mfma_f32_32x32x16_bf16 v[{c}:{c+15}], v[{w}:{w+3}], v[{x}:{x+3}], v[{c}:{c+15}]"
            w0 = wf_(st, 0)
            main = [mm(0, 0), mm(0, 1), mm(1, 0), mm(1, 1),
                    f"v_mfma_f32_16x16x32_bf16 v[160:163], v[172:175], v[{x0}:{x0+3}], v[160:163]",
                    f"v_mfma_f32_16x16x32_bf16 v[168:171], v[172:175], v[{w0}:{w0+3}], v[168:171]",
                    f"v_mfma_f32_4x4x4_16b_bf16 v[164:167], v[{x0}:{x0+1}], v[{x0}:{x0+1}], v[164:167]",
                    f"v_mfma_f32_4x4x4_16b_bf16 v[176:179], v[{x0+2}:{x0+3}], v[{x0+2}:{x0+3}], v[176:179]"]
            st_ = [m for q, m in enumerate(main[4:]) if statmask >> q & 1]
            if statpos == 0:
                seq = interleave(main[:4], fill) + st_
            elif statpos == 1:
                seq = st_ + interleave(main[:4], fill)
            else:
                mm_ = []
                for q in range(4):
                    mm_.append(main[q])
                    if q < len(st_): mm_.append(st_[q])
                seq = interleave(mm_, fill)
            for x in seq: a.e(x)
    stamp(a, 3, stamps)
    a.e(f"""
    s_mov_b32 s54, 0x22222222
    s_mov_b32 s55, 0x22222222
    s_mov_b32 s56, 0x44444444
    s_mov_b32 s57, 0x44444444
    s_mov_b32 s58, 0x88888888
    s_mov_b32 s59, 0x88888888
    s_mov_b32 s60, {f32bits(1.0/640)}
    s_mov_b32 s61, {f32bits(1e-5)}
    s_nop 4
    v_add_f32 v164, v164, v176
    v_add_f32 v165, v165, v177
    v_add_f32 v166, v166, v178
    v_add_f32 v167, v167, v179
    v_cndmask_b32 v164, v164, v165, s[54:55]
    v_cndmask_b32 v164, v164, v166, s[56:57]
    v_cndmask_b32 v164, v164, v167, s[58:59]
    v_mov_b32 v165, v164
    v_mul_f32 v160, s60, v160            ; mean
    s_nop 0
    v_permlane32_swap_b32 v164, v165
    v_add_f32 v164, v164, v165
    v_mul_f32 v164, s60, v164            ; E[x^2]
    v_fma_f32 v164, -v160, v160, v164    ; var
    v_max_f32 v164, 0, v164
    v_cvt_pk_bf16_f32 v164, v164, v164
    v_and_b32 v164, 0xffff0000, v164
    v_add_f32 v164, s61, v164
    v_cvt_pk_bf16_f32 v164, v164, v164
    v_and_b32 v164, 0xffff0000, v164
    v_sqrt_f32 v164, v164
    v_cvt_pk_bf16_f32 v180, -v160, -v160 ; (-m,-m) packed
    v_cvt_pk_bf16_f32 v164, v164, v164
    v_and_b32 v164, 0xffff0000, v164
    v_rcp_f32 v181, v164                 ; rstd
    v_cvt_pk_bf16_f32 v169, v168, v168
    v_and_b32 v169, 0xffff0000, v169
    v_sub_f32 v169, v168, v169
    v_cvt_pk_bf16_f32 v184, v168, v169
    v_cmp_gt_u32 vcc, 32, v2
    v_mov_b32 v185, 0
    v_mov_b32 v187, 0
    v_cndmask_b32 v184, 0, v184, vcc
    v_lshlrev_b32 v14, 3, v2             ; lane*8
    s_lshl_b32 s50, s28, 10
    v_add_u32 v15, s50, v14
    s_xor_b32 s51, s50, 1024
    v_add_u32 v16, s51, v14
    s_xor_b32 s51, s50, 2048
    v_add_u32 v17, s51, v14
    s_barrier
    ds_write_b64 v15, v[180:181]
    ds_write_b32 v15, v184 offset:512
    s_waitcnt lgkmcnt(0)
    s_barrier
    ds_read_b64 v[182:183], v16
    ds_read_b32 v186, v17 offset:512
    s_mov_b32 s62, {f32bits(20**-0.5 * math.log2(math.e))}
    s_cmp_eq_u32 s41, 0
    s_cselect_b32 s62, s62, 1.0
    v_mov_b32 v188, v180
    v_mov_b32 v189, 0
    v_mov_b32 v191, 0
    v_mul_f32 v192, s62, v181
    v_lshlrev_b32 v14, 4, v12            ; tau*16
    v_lshl_add_u32 v14, v13, 10, v14     ; + g*1024
    s_lshr_b32 s63, s33, 6
    s_add_u32 s63, s63, s35
    s_mul_i32 s63, s63, {QKV_BLK}
    s_lshl_b32 s64, s40, 7
    s_add_u32 s63, s63, s64
    s_add_u32 s63, s63, {QKV_OFF}
    s_lshl_b32 s64, s35, 12              ; ft(slot0)*4096
    s_lshl_b32 s65, s36, 9               ; tt(slot0)*512
    s_waitcnt lgkmcnt(0)
    v_mov_b32 v190, v182
    v_mul_f32 v194, s62, v183
    s_nop 0
    """)
    A = {0: 184, 1: 186}; B = {0: 188, 1: 190}; SC = {0: 192, 1: 194}
    for fs in range(2):
        for ts in range(2):
            c = acc(fs, ts)
            a.e(f"v_mfma_f32_32x32x8_bf16 v[{c}:{c+15}], v[{A[fs]}:{A[fs]+1}], v[{B[ts]}:{B[ts]+1}], v[{c}:{c+15}]")
    a.e("s_nop 7")
    for fs in range(2):
        for ts in range(2):
            c = acc(fs, ts)
            if (fs, ts) == (1, 1): pass
            a.e(f"s_xor_b32 s66, s64, {4096*fs}\ns_xor_b32 s67, s65, {512*ts}\ns_add_u32 s66, s66, s67\ns_add_u32 s66, s66, s63")
            for r in range(0, 16, 2):
                a.e(f"v_pk_mul_f32 v[{c+r}:{c+r+1}], v[{c+r}:{c+r+1}], v[{SC[ts]}:{SC[ts]+1}] op_sel_hi:[1,0]")
            o = 200 + 8 * (2 * fs + ts)
            for r in range(8):
                a.e(f"v_cvt_pk_bf16_f32 v{o+r}, v{c+2*r}, v{c+2*r+1}")
            a.e(f"buffer_store_dwordx4 v[{o}:{o+3}], v14, s[16:19], s66 offen")
            a.e(f"buffer_store_dwordx4 v[{o+4}:{o+7}], v14, s[16:19], s66 offen offset:2048")
    stamp(a, 4, stamps)
    if stamps:
        a.e("s_waitcnt vmcnt(0)")
        stamp(a, 5, stamps)
    stamp_flush(a, stamps, 6, 16, kidx, L_end)
    a.e(f"{L_end}:\ns_endpgm")
    a.end_kernel(name, 232, 102)
    a.launch(name, 256, 256, NS * 32768)
```

```python
from common import *
ARR = 8192 + 64
KF0, KF1, KS, VF0, VF1, VS, AUX = [i * ARR for i in range(7)]
K2_LDS = 7 * ARR
NEG = 0xf149f2ca
def gen_attn_body(a, name, stamps, kidx, L_end):
    a.e(f"""
    v_lshrrev_b32 v1, 6, v0
    v_and_b32 v2, 63, v0                 ; lane
    s_and_b32 s26, s2, 7
    s_lshr_b32 s27, s2, 3                ; r
    v_readfirstlane_b32 s28, v1          ; wave
    s_lshr_b32 s29, s26, 1               ; i
    s_and_b32 s30, s26, 1                ; j
    s_and_b32 s31, s27, 1
    s_lshl_b32 s32, s29, 1
    s_add_u32 s31, s31, s32              ; b (0..7)
    s_lshr_b32 s32, s27, 1
    s_lshl_b32 s33, s30, 4
    s_add_u32 s32, s32, s33              ; head
    s_and_b32 s33, s32, 1                ; odd
    s_lshr_b32 s34, s32, 1
    s_mul_i32 s34, s34, 5                ; 5P
    s_mul_i32 s35, s33, 3
    s_add_u32 s35, s35, s34              ; F0 chunk (F1 = +1)
    s_add_u32 s36, s34, 2
    s_lshl_b32 s37, s31, 2
    s_add_u32 s37, s37, s28
    s_sub_u32 s37, s37, 4
    s_max_i32 s37, s37, 0
    s_mul_i32 s37, s37, {QKV_BLK}
    s_add_u32 s37, s37, {QKV_OFF}
    s_lshl_b32 s38, s35, 10
    s_add_u32 s38, s38, s37              ; + F0*1024
    s_lshl_b32 s39, s36, 10
    s_add_u32 s39, s39, s37              ; + S*1024
    s_lshl_b32 s40, s28, 10
    v_lshlrev_b32 v3, 4, v2              ; lane*16
    v_and_b32 v4, 31, v2                 ; tau
    v_lshrrev_b32 v5, 5, v2              ; g
    s_lshl_b32 s41, s31, 2
    s_lshr_b32 s42, s28, 1
    s_add_u32 s41, s41, s42
    s_mul_i32 s43, s41, {QKV_BLK}
    s_add_u32 s43, s43, {QKV_OFF}
    s_and_b32 s42, s28, 1
    s_lshl_b32 s42, s42, 9
    s_add_u32 s43, s43, s42
    s_lshl_b32 s44, s35, 10
    s_add_u32 s44, s44, s43              ; Q F0
    s_lshl_b32 s45, s36, 10
    s_add_u32 s45, s45, s43
    s_lshl_b32 s46, s33, 3
    s_add_u32 s45, s45, s46
    v_lshlrev_b32 v6, 4, v4              ; tau*16
    v_lshl_add_u32 v7, v5, 10, v6        ; + g*1024
    """)
    a.e("s_waitcnt lgkmcnt(0)")
    srd(a, 16, 24, WS_BYTES)
    stamp(a, 1, stamps)
    def dma(arr, sreg, off):
        a.e(f"s_add_u32 m0, s40, {arr}\ns_add_u32 s47, s{sreg}, {off}\nbuffer_load_dwordx4 v3, s[16:19], s47 offen lds")
    dma(KF0, 38, 80 * 1024); dma(KF1, 38, 81 * 1024); dma(KS, 39, 80 * 1024)
    a.e("buffer_load_dwordx4 v[8:11], v7, s[16:19], s44 offen")
    a.e("buffer_load_dwordx2 v[12:13], v6, s[16:19], s45 offen")
    dma(VF0, 38, 160 * 1024); dma(VF1, 38, 161 * 1024); dma(VS, 39, 160 * 1024)
    a.e(f"""
    s_cmp_eq_u32 s31, 0
    s_cselect_b32 s48, 256, 0
    v_cmp_gt_u32 vcc, s48, v0
    v_mov_b32 v16, 0x3f803f80
    v_mov_b32 v17, 0x3f803f80
    v_mov_b32 v18, {NEG >> 16}
    v_mov_b32 v19, 0
    v_cndmask_b32 v18, 0, v18, vcc
    v_lshlrev_b32 v14, 4, v0
    ds_write_b128 v14, v[16:19] offset:{AUX}
    s_lshl_b32 s49, s28, 9
    v_add_u32 v15, s49, v6
    v_mul_u32_u24 v20, {ARR}, v5
    v_add_u32 v20, v20, v15
    s_add_u32 s50, s46, {KS}
    s_sub_u32 s51, {AUX+8}, s50
    v_mul_u32_u24 v21, s51, v5
    v_add3_u32 v21, v21, v15, s50
    v_bfe_u32 v23, v2, 2, 2              ; r
    v_lshl_add_u32 v23, v5, 2, v23       ; 4g + r
    v_lshlrev_b32 v23, 4, v23
    v_add_u32 v23, s49, v23
    v_and_b32 v24, 1, v2
    v_mul_u32_u24 v24, {ARR}, v24
    v_bfe_u32 v25, v2, 1, 1
    v_lshl_add_u32 v24, v25, 3, v24
    v_add_u32 v24, {VF0}, v24
    v_and_b32 v25, 3, v2
    v_cmp_eq_u32 vcc, 0, v25
    s_add_u32 s50, s46, {VS}
    v_mov_b32 v26, {AUX}
    v_mov_b32 v27, s50
    v_cndmask_b32 v26, v26, v27, vcc
    v_and_b32 v25, 16, v2
    v_cmp_eq_u32 vcc, 0, v25
    s_nop 1
    v_cndmask_b32 v22, v26, v24, vcc
    v_add_u32 v22, v22, v23
    """)
    a.e(f"""
    v_lshlrev_b32 v23, 2, v5
    v_sub_u32 v23, v4, v23               ; tau - 4g
    v_mov_b32 v24, {NEG}
    """)
    for r in range(16):
        row = 8 * (r >> 2) + (r & 3)
        a.e(f"""v_cmp_le_i32 vcc, {row}, v23
        s_nop 1
        v_cndmask_b32 v{32+r}, v24, 0, vcc
        v_cndmask_b32 v{48+r}, 0, v24, vcc""".replace("v_cndmask_b32 v%d, v24, 0, vcc" % (32 + r), "v_cndmask_b32_e64 v%d, v24, 0, vcc" % (32 + r)))
    a.e(f"""
    v_cmp_gt_u32 vcc, 32, v2
    v_mov_b32 v23, 0x3f80
    s_waitcnt vmcnt(3)
    v_cndmask_b32 v12, v23, v12, vcc
    v_cndmask_b32 v13, 0, v13, vcc
    s_waitcnt lgkmcnt(0)
    s_barrier
    """)
    stamp(a, 2, stamps)
    def kf(t): return 64 + 6 * t
    for t in range(9):
        a.e(f"ds_read_b128 v[{kf(t)}:{kf(t)+3}], v20 offset:{512*t}")
        a.e(f"ds_read_b64 v[{kf(t)+4}:{kf(t)+5}], v21 offset:{512*t}")
    S = [120, 136]
    def qk(t, sb, c):
        k = kf(t)
        return [f"v_mfma_f32_32x32x16_bf16 v[{sb}:{sb+15}], v[{k}:{k+3}], v[8:11], {c}",
                f"v_mfma_f32_32x32x8_bf16 v[{sb}:{sb+15}], v[{k+4}:{k+5}], v[12:13], v[{sb}:{sb+15}]"]
    def c1(t): return "v[48:63]" if t == 0 else ("v[32:47]" if t == 8 else "0")
    a.e(f"v_mov_b32 v28, {NEG}\nv_mov_b32 v29, {NEG}")
    def needk(t): return max(0, min(15, 18 - 2 * (t + 1)))
    a.e(f"s_waitcnt lgkmcnt({needk(0)})")
    for x in qk(0, S[0], c1(0)): a.e(x)
    for t in range(9):
        sb = S[t & 1]
        if t < 8:
            a.e(f"s_waitcnt lgkmcnt({needk(t+1)})")
            for x in qk(t + 1, S[(t + 1) & 1], c1(t + 1)): a.e(x)
            a.e("s_nop 7\ns_nop 1")
        else:
            a.e("s_nop 7\ns_nop 3")
        for r in range(0, 16, 2):
            m = 28 + ((r >> 1) & 1)
            a.e(f"v_max3_f32 v{m}, v{sb+r}, v{sb+r+1}, v{m}")
    a.e("""
    v_max_f32 v28, v28, v29
    v_mov_b32 v29, v28
    s_nop 1
    v_permlane32_swap_b32 v28, v29
    v_max_f32 v28, v28, v29
    """)
    for r in range(16):
        a.e(f"v_sub_f32 v{48+r}, v{48+r}, v28")
    for r in range(16):
        a.e(f"v_sub_f32 v{152+r}, 0, v28")
    for r in range(16):
        a.e(f"v_sub_f32 v{32+r}, v{32+r}, v28")
    stamp(a, 3, stamps)
    a.e("s_waitcnt vmcnt(0)\ns_barrier")
    def c2(t): return "v[48:63]" if t == 0 else ("v[32:47]" if t == 8 else "v[152:167]")
    VFR = [168, 176]
    PB = 184
    OACC = 192
    def vread(t):
        b = VFR[t & 1]
        return [f"ds_read_b64_tr_b16 v[{b+4*u+2*hf}:{b+4*u+2*hf+1}], v22 offset:{512*t + 256*u + 128*hf}" for u in range(2) for hf in range(2)]
    for x in vread(0): a.e(x)
    for x in qk(0, S[0], c2(0)): a.e(x)
    for t in range(9):
        sb = S[t & 1]
        if t < 8:
            for x in qk(t + 1, S[(t + 1) & 1], c2(t + 1)): a.e(x)
            for x in vread(t + 1): a.e(x)
            if t == 0: a.e("s_nop 5")
        for r in range(16):
            a.e(f"v_exp_f32 v{sb+r}, v{sb+r}")
            if r >= 3 and r % 2 == 1:
                q = (r - 3) // 2
                a.e(f"v_cvt_pk_bf16_f32 v{PB+q}, v{sb+2*q}, v{sb+2*q+1}")
        a.e("s_nop 0")
        a.e(f"v_cvt_pk_bf16_f32 v{PB+7}, v{sb+14}, v{sb+15}")
        a.e(f"s_waitcnt lgkmcnt({4 if t < 8 else 0})")
        b = VFR[t & 1]
        cin = "0" if t == 0 else f"v[{OACC}:{OACC+15}]"
        a.e(f"v_mfma_f32_32x32x16_bf16 v[{OACC}:{OACC+15}], v[{b}:{b+3}], v[{PB}:{PB+3}], {cin}")
        a.e(f"v_mfma_f32_32x32x16_bf16 v[{OACC}:{OACC+15}], v[{b+4}:{b+7}], v[{PB+4}:{PB+7}], v[{OACC}:{OACC+15}]")
    stamp(a, 4, stamps)
    a.e(f"""
    s_mul_i32 s43, s41, {O_BLK}
    s_add_u32 s43, s43, {O_OFF}
    s_add_u32 s43, s43, s42
    s_lshl_b32 s44, s35, 10
    s_add_u32 s44, s44, s43
    s_lshl_b32 s45, s36, 10
    s_add_u32 s45, s45, s43
    s_add_u32 s45, s45, s46
    s_nop 3
    v_rcp_f32 v28, v{OACC+12}
    s_nop 0
    """)
    for r in range(12):
        a.e(f"v_mul_f32 v{OACC+r}, v{OACC+r}, v28")
    for q in range(6):
        a.e(f"v_cvt_pk_bf16_f32 v{PB+q}, v{OACC+2*q}, v{OACC+2*q+1}")
    a.e(f"""
    buffer_store_dwordx4 v[{PB}:{PB+3}], v7, s[16:19], s44 offen
    s_mov_b32 exec_hi, 0
    buffer_store_dwordx2 v[{PB+4}:{PB+5}], v6, s[16:19], s45 offen
    s_mov_b32 exec_hi, -1
    """)
    if stamps:
        a.e("s_waitcnt vmcnt(0)")
        stamp(a, 5, stamps)
    stamp_flush(a, stamps, 6, 16, kidx, L_end)

def gen_k2(a, name="k2_kernel", stamps=False, kidx=1):
    a.begin_kernel(name)
    L_end = f"{name}_end"
    stamp(a, 0, stamps)
    a.e(f"""
    s_cmp_ge_u32 s2, 256
    s_cbranch_scc1 {L_end}
    s_load_dwordx2 s[24:25], s[0:1], 72
    """)
    gen_attn_body(a, name, stamps, kidx, L_end)
    a.e(f"{L_end}:\ns_endpgm")
    a.end_kernel(name, 208, 102)
    a.launch(name, 256, 512, K2_LDS)
```

```python
from stream import *
def stats_combine(a, vin, vt, want):
    s, q = vin, vin + 1
    a.e(f"""
    v_add_f32 v{s}, v{vin}, v{vin+2}
    v_add_f32 v{q}, v{vin+1}, v{vin+3}
    v_mov_b32 v{vt}, v{s}
    v_mov_b32 v{vt+1}, v{q}
    s_nop 1
    v_permlane16_swap_b32 v{s}, v{vt}
    v_permlane16_swap_b32 v{q}, v{vt+1}
    v_add_f32 v{s}, v{s}, v{vt}
    v_add_f32 v{q}, v{q}, v{vt+1}
    v_mov_b32 v{vt}, v{s}
    v_mov_b32 v{vt+1}, v{q}
    s_nop 1
    v_permlane32_swap_b32 v{s}, v{vt}
    v_permlane32_swap_b32 v{q}, v{vt+1}
    v_add_f32 v{s}, v{s}, v{vt}
    v_add_f32 v{q}, v{q}, v{vt+1}
    v_mul_f32 v{s}, s60, v{s}
    """)
    if want == "r2":
        a.e(f"""
        v_mul_f32 v{q}, s60, v{q}
        v_fma_f32 v{q}, -v{s}, v{s}, v{q}
        v_max_f32 v{q}, 0, v{q}
        v_cvt_pk_bf16_f32 v{q}, v{q}, v{q}
        v_and_b32 v{q}, 0xffff0000, v{q}
        v_add_f32 v{q}, s61, v{q}
        v_cvt_pk_bf16_f32 v{q}, v{q}, v{q}
        v_and_b32 v{q}, 0xffff0000, v{q}
        v_sqrt_f32 v{q}, v{q}
        s_nop 0
        v_cvt_pk_bf16_f32 v{q}, v{q}, v{q}
        v_and_b32 v{q}, 0xffff0000, v{q}
        v_rcp_f32 v{q}, v{q}
        s_nop 0
        v_mul_f32 v{q}, v{q}, v{q}
        """)

def gen_k35(a, kind, stamps=False, kidx=0, look=70, pd=6, nslot=None, rate=100, look0=30):
    name = f"k{kind}_kernel"
    NK = 20 if kind == 3 else 54
    XOFF, XBLK = (O_OFF, O_BLK) if kind == 3 else (ACT_OFF, ACT_BLK)
    WOFF = WO_OFF if kind == 3 else WD_OFF
    if nslot is None: nslot = 7 if kind == 3 else 9
    a.begin_kernel(name)
    L_end = f"{name}_end"
    stamp(a, 0, stamps)
    a.e(f"""
    s_cmp_ge_u32 s2, 256
    s_cbranch_scc1 {L_end}
    s_load_dwordx2 s[4:5], s[0:1], {0 if kind == 3 else 56}
    s_load_dwordx2 s[24:25], s[0:1], 72
    v_lshrrev_b32 v1, 6, v0
    v_and_b32 v2, 63, v0
    s_and_b32 s26, s2, 7
    s_lshr_b32 s27, s2, 3
    v_readfirstlane_b32 s28, v1          ; wave
    s_and_b32 s29, s27, 3
    s_lshr_b32 s30, s27, 2               ; slice
    s_lshl_b32 s31, s26, 2
    s_add_u32 s31, s31, s29              ; blk
    v_and_b32 v4, 15, v2                 ; tau
    v_lshrrev_b32 v5, 4, v2              ; q4
    v_lshlrev_b32 v3, 4, v2              ; lane*16
    v_add_u32 v8, 0x10000, v3
    v_add_u32 v9, 0x20000, v3
    v_lshlrev_b32 v6, 4, v4
    v_lshl_add_u32 v6, v5, 10, v6        ; q4*1024 + tau*16
    s_lshl_b32 s32, s28, 8               ; wave*256
    s_mul_i32 s33, s31, {XBLK}
    s_add_u32 s33, s33, s32
    s_add_u32 s33, s33, {XOFF}           ; X base
    s_lshl_b32 s34, s28, 12              ; wave*4096
    s_mul_i32 s35, s30, {NK*5120}
    s_add_u32 s35, s35, s34
    s_add_u32 s35, s35, {WOFF}           ; W base
    ; H addressing
    s_mul_i32 s36, s31, {H_BLK}
    s_add_u32 s36, s36, s32
    s_mul_i32 s37, s30, 10240
    s_add_u32 s36, s36, s37
    s_add_u32 s36, s36, {H_OFF}
    s_add_u32 s37, s36, 4096
    s_add_u32 s38, s36, 8192
    v_lshrrev_b32 v7, 1, v5
    v_lshlrev_b32 v7, 10, v7
    v_lshl_add_u32 v7, v4, 4, v7
    v_and_b32 v10, 1, v5
    v_lshl_add_u32 v7, v10, 3, v7        ; (q4>>1)*1024 + tau*16 + (q4&1)*8
    s_lshl_b32 s39, s31, 6
    s_lshl_b32 s40, s28, 4
    s_add_u32 s39, s39, s40
    s_mul_i32 s40, s39, 1280
    s_mul_i32 s41, s30, 160
    s_add_u32 s40, s40, s41
    v_mul_u32_u24 v10, 1280, v4
    v_lshl_add_u32 v11, v5, 3, v10       ; tau*1280 + q4*8
    v_lshl_add_u32 v10, v5, 4, v10       ; tau*1280 + q4*16
    s_lshl_b32 s42, s39, 6
    s_add_u32 s42, s42, {STAT_OFF}
    v_lshlrev_b32 v12, 6, v4             ; tau*64
    v_lshl_add_u32 v13, v5, 4, v12       ; + q4*16
    s_mov_b32 s60, {f32bits(1.0/640)}
    s_mov_b32 s61, {f32bits(1e-5)}
    s_waitcnt lgkmcnt(0)
    """)
    srd(a, 8, 4, T * D * 2)
    srd(a, 16, 24, WS_BYTES)
    stamp(a, 1, stamps)
    nfrag = NK * 5
    S = Stream(a, nfrag, nslot, 16, 3, [3, 8, 9], 35, 34, 28, wreg0=64, nwreg=8, pd=pd, look=look)
    S.dma_items(lambda st: 16 * st - pd)
    for ks in range(NK):
        S.add_item(5 * ks - 0.5, ("x", ks), f"s_add_u32 s72, s33, {ks*4096}\nbuffer_load_dwordx4 a[{4*ks}:{4*ks+3}], v6, s[16:19], s72 offen")
    RES = 40
    if kind == 3:
        S.add_item(nfrag - 30, ("r", 0), f"buffer_load_dwordx4 v[{RES}:{RES+3}], v10, s[8:11], s40 offen")
        S.add_item(nfrag - 29, ("r", 1), f"buffer_load_dwordx4 v[{RES+4}:{RES+7}], v10, s[8:11], s40 offen offset:64")
        S.add_item(nfrag - 28, ("r", 2), f"buffer_load_dwordx2 v[{RES+8}:{RES+9}], v11, s[8:11], s40 offen offset:128")
    else:
        S.add_item(nfrag - 60, ("r", 0), f"buffer_load_dwordx4 v[{RES}:{RES+3}], v6, s[16:19], s36 offen")
        S.add_item(nfrag - 59, ("r", 1), f"buffer_load_dwordx4 v[{RES+4}:{RES+7}], v6, s[16:19], s37 offen")
        S.add_item(nfrag - 58, ("r", 2), f"buffer_load_dwordx2 v[{RES+8}:{RES+9}], v7, s[16:19], s38 offen")
        S.add_item(nfrag - 57, ("r", 3), f"buffer_load_dwordx4 v[52:55], v13, s[16:19], s42 offen")
    S.finalize_items()
    ACC = 16
    def mf(ci, w):
        ks, Tt = divmod(ci, 5)
        c = ACC + 4 * Tt
        cin = "0" if ks == 0 else f"v[{c}:{c+3}]"
        return [f"v_mfma_f32_16x16x32_bf16 v[{c}:{c+3}], v[{w}:{w+3}], a[{4*ks}:{4*ks+3}], {cin}"]
    def xneed(ci):
        ks, Tt = divmod(ci, 5)
        if Tt == 0: return lambda k: k[0] == "x" and k[1] <= ks
        return None
    first = [True]
    def fill(ci):
        if ci == 0 and stamps: return [f"s_memtime s[84:85]"]
        return []
    S.run(list(range(nfrag)), mf, xneed, fill, rate=rate, look0=look0)
    stamp(a, 3, stamps)
    for x in S.wait_for(lambda k: k[0] == "r"): a.e(x)
    U = 96
    for q in range(10):
        a.e(f"v_lshlrev_b32 v{U+2*q}, 16, v{RES+q}\nv_and_b32 v{U+2*q+1}, 0xffff0000, v{RES+q}")
    if kind == 5:
        stats_combine(a, 52, 56, "r2")
        for e in range(20):
            a.e(f"v_fma_f32 v{U+e}, v{ACC+e}, v53, v{U+e}")
    else:
        for e in range(20):
            a.e(f"v_add_f32 v{U+e}, v{ACC+e}, v{U+e}")
    O = 120
    for q in range(10):
        a.e(f"v_cvt_pk_bf16_f32 v{O+q}, v{U+2*q}, v{U+2*q+1}")
    if kind == 3:
        a.e(f"""
        buffer_store_dwordx4 v[{O}:{O+3}], v6, s[16:19], s36 offen
        buffer_store_dwordx4 v[{O+4}:{O+7}], v6, s[16:19], s37 offen
        buffer_store_dwordx2 v[{O+8}:{O+9}], v7, s[16:19], s38 offen
        v_add_f32 v52, v{U}, v{U+1}
        v_mul_f32 v53, v{U}, v{U}
        v_mul_f32 v55, v{U+1}, v{U+1}
        v_add_f32 v54, v{U+2}, v{U+3}
        """)
        for e in range(2, 20):
            a.e(f"v_fmac_f32 v{53 + 2*(e&1)}, v{U+e}, v{U+e}")
            if e >= 4: a.e(f"v_add_f32 v{52 + 2*(e&1)}, v{52 + 2*(e&1)}, v{U+e}")
        a.e("s_mov_b32 s60, 1.0")
        stats_combine(a, 52, 56, "")
        a.e(f"""
        s_lshl_b32 s43, s30, 3
        s_add_u32 s43, s43, s42
        s_mov_b64 exec, 0xffff
        buffer_store_dwordx2 v[52:53], v12, s[16:19], s43 offen
        s_mov_b64 exec, -1
        """)
    else:
        a.e(f"""
        buffer_store_dwordx4 v[{O}:{O+3}], v10, s[8:11], s40 offen
        buffer_store_dwordx4 v[{O+4}:{O+7}], v10, s[8:11], s40 offen offset:64
        buffer_store_dwordx2 v[{O+8}:{O+9}], v11, s[8:11], s40 offen offset:128
        """)
    stamp(a, 4, stamps)
    if stamps:
        a.e("s_waitcnt vmcnt(0)")
        stamp(a, 5, stamps)
    stamp_flush(a, stamps, 6, 16, kidx, L_end)
    a.e(f"{L_end}:\ns_endpgm")
    a.end_kernel(name, 132 + 4 * NK, 102, 132)
    a.launch(name, 256, 256, nslot * 16384)
```

```python
from stream import *
from k35 import stats_combine
def gen_k4(a, stamps=False, kidx=0, look=64, pd=6, nslot=9, rate=50, TS=3, look0=30):
    name = "k4_kernel"
    a.begin_kernel(name)
    L_end = f"{name}_end"
    stamp(a, 0, stamps)
    a.e(f"""
    s_cmp_ge_u32 s2, 256
    s_cbranch_scc1 {L_end}
    s_load_dwordx2 s[24:25], s[0:1], 72
    v_lshrrev_b32 v1, 6, v0
    v_and_b32 v2, 63, v0
    s_and_b32 s26, s2, 7
    s_lshr_b32 s27, s2, 3
    v_readfirstlane_b32 s28, v1          ; wave
    s_lshr_b32 s29, s26, 1               ; i
    s_and_b32 s30, s26, 1                ; j
    s_and_b32 s31, s27, 3                ; m
    s_lshr_b32 s32, s27, 2               ; sl'
    s_lshl_b32 s33, s29, 3
    s_lshl_b32 s34, s31, 1
    s_add_u32 s33, s33, s34
    s_lshr_b32 s34, s28, 1
    s_add_u32 s33, s33, s34
    s_and_b32 s35, s28, 1
    s_lshl_b32 s35, s35, 9               ; (w&1)*512
    v_and_b32 v4, 15, v2
    v_lshrrev_b32 v5, 4, v2
    v_lshlrev_b32 v3, 4, v2
    v_add_u32 v8, 0x10000, v3
    v_add_u32 v9, 0x20000, v3
    v_lshlrev_b32 v6, 4, v4
    v_lshl_add_u32 v6, v5, 10, v6
    v_lshrrev_b32 v7, 1, v5
    v_lshlrev_b32 v7, 10, v7
    v_lshl_add_u32 v7, v4, 4, v7
    v_and_b32 v10, 1, v5
    v_lshl_add_u32 v7, v10, 3, v7
    s_mul_i32 s36, s33, {H_BLK}
    s_add_u32 s36, s36, s35
    s_add_u32 s36, s36, {H_OFF}          ; X base
    s_lshl_b32 s37, s28, 12
    s_lshl_b32 s38, s30, 3
    s_add_u32 s38, s38, s32              ; slice
    s_mul_i32 s38, s38, {GU_SLICE}
    s_add_u32 s38, s38, s37
    s_add_u32 s38, s38, {WGU_OFF}        ; W base
    s_mul_i32 s39, s32, 14
    s_min_u32 s39, s39, 94
    s_mul_i32 s40, s30, 108
    s_add_u32 s39, s39, s40
    s_lshl_b32 s39, s39, 10
    s_mul_i32 s40, s33, {ACT_BLK}
    s_add_u32 s39, s39, s40
    s_add_u32 s39, s39, s35
    s_add_u32 s39, s39, {ACT_OFF}
    s_lshl_b32 s41, s33, 12
    s_lshl_b32 s42, s35, 2
    s_add_u32 s41, s41, s42
    s_add_u32 s41, s41, {STAT_OFF}
    v_lshlrev_b32 v12, 6, v4
    v_lshl_add_u32 v13, v5, 4, v12
    s_mov_b32 s60, {f32bits(1.0/640)}
    s_waitcnt lgkmcnt(0)
    """)
    srd(a, 16, 24, WS_BYTES)
    stamp(a, 1, stamps)
    nfrag = 21 * 14
    groups = [[0, 1, 2, 3], [4, 5, 6, 7], [8, 9, 10, 11], [12, 13]]
    order = list(range((21 - TS) * 14))
    gend = {}
    for gi, g in enumerate(groups):
        for si in range(21 - TS, 21):
            for t in g: order.append(si * 14 + t)
        gend[gi] = len(order) - 1
    first_use = {}
    for ci, p in enumerate(order):
        first_use.setdefault(p // 16, ci)
    for st in range((nfrag + 15) // 16 - 2, -1, -1):
        first_use[st] = min(first_use[st], first_use[st + 1])
    S = Stream(a, nfrag, nslot, 16, 3, [3, 8, 9], 38, 37, 28, wreg0=160, nwreg=8, pd=pd, look=look)
    S.dma_items(lambda st: first_use[st] - pd)
    def ks_of(si): return None if si == CORR_POS else (si if si < CORR_POS else si - 1)
    xfirst = {}
    for ci, p in enumerate(order):
        xfirst.setdefault(p // 14, ci)
    for si in range(21):
        ks = ks_of(si)
        if ks is None: continue
        for tt in range(2):
            t = f"buffer_load_dwordx4 a[{8*ks+4*tt}:{8*ks+4*tt+3}], v6, s[16:19], s72 offen offset:{256*tt}"
            if tt == 0: t = f"s_add_u32 s72, s36, {ks*4096}\n" + t
            S.add_item(xfirst[si] - 0.5 + 0.01 * tt, ("x", si, tt), t)
    for tt in range(2):
        S.add_item(30 + tt, ("s", tt), f"buffer_load_dwordx4 v[{192+4*tt}:{195+4*tt}], v13, s[16:19], s41 offen offset:{1024*tt}")
    S.finalize_items()
    ACC = 16
    def acc(t, tt): return ACC + 8 * t + 4 * tt
    CB = 204
    def mf(ci, w):
        si, t = divmod(order[ci], 14)
        ks = ks_of(si)
        out = []
        for tt in range(2):
            c = acc(t, tt)
            cin = "0" if si == 0 else f"v[{c}:{c+3}]"
            b = f"a[{8*ks+4*tt}:{8*ks+4*tt+3}]" if ks is not None else f"v[{CB+4*tt}:{CB+4*tt+3}]"
            out.append(f"v_mfma_f32_16x16x32_bf16 v[{c}:{c+3}], v[{w}:{w+3}], {b}, {cin}")
        return out
    def xneed(ci):
        si = order[ci] // 14
        if xfirst[si] == ci and ks_of(si) is not None:
            return lambda k: k[0] == "x" and k[1] == si
        return None
    OUT = 128
    def epi(gi):
        g = groups[gi]; out = []
        for tt in range(2):
            o = OUT + 8 * gi + 4 * tt
            for half in range(len(g) // 2):
                G = acc(g[2 * half], tt); U = acc(g[2 * half + 1], tt)
                for e in range(4): out.append(f"v_max_f32 v{G+e}, 0, v{G+e}")
                for e in range(4): out.append(f"v_mul_f32 v{G+e}, v{G+e}, v{U+e}")
                for q in range(2): out.append(f"v_cvt_pk_bf16_f32 v{o+2*half+q}, v{G+2*q}, v{G+2*q+1}")
            if len(g) == 4:
                out.append(("st", f"s_add_u32 s73, s39, {4096*gi}\nbuffer_store_dwordx4 v[{o}:{o+3}], v6, s[16:19], s73 offen offset:{256*tt}"))
            else:
                out.append(("st", f"s_add_u32 s73, s39, {4096*gi}\nbuffer_store_dwordx2 v[{o}:{o+1}], v7, s[16:19], s73 offen offset:{256*tt}"))
        return out
    pend = []
    class Cap:
        def __init__(s): s.l = []
        def e(s, t): s.l += [x.strip() for x in t.split("\n") if x.strip()]
    statci = CORR_POS * 14 - 20
    def fill(ci):
        out = []
        if ci == 0 and stamps: out.append("s_memtime s[84:85]")
        if ci == statci:
            out += S.wait_for(lambda k: k[0] == "s")
            c = Cap()
            for tt in range(2):
                stats_combine(c, 192 + 4 * tt, 200, "")
                c.e(f"v_cvt_pk_bf16_f32 v{CB+4*tt}, -v{192+4*tt}, -v{192+4*tt}")
                for q in range(1, 4): c.e(f"v_mov_b32 v{CB+4*tt+q}, v{CB+4*tt}")
            pend.extend(c.l)
        for gi in range(3):
            if ci == gend[gi] + 3: pend.extend(epi(gi))
        k = 4
        while pend and k > 0:
            x = pend.pop(0); k -= 1
            if isinstance(x, tuple): x = S.extra(("st",), x[1])
            out.append(x)
        return out
    S.run(order, mf, xneed, fill, rate=rate, look0=look0)
    stamp(a, 3, stamps)
    a.e("s_nop 7")
    for x in pend + epi(3):
        a.e(x[1] if isinstance(x, tuple) else x)
    stamp(a, 4, stamps)
    if stamps:
        a.e("s_waitcnt vmcnt(0)")
        stamp(a, 5, stamps)
    stamp_flush(a, stamps, 6, 16, kidx, L_end)
    a.e(f"{L_end}:\ns_endpgm")
    a.end_kernel(name, 212 + 160, 102, 212)
    a.launch(name, 256, 256, nslot * 16384)
```

```python
from common import *
KR_UNITS = 160 + 148
KR_LDS = 28672
def gen_r_body(a, name, unit_sreg, lds_base_sreg, L_done, tid="v0"):
    LB = f"{name}_rb"
    U = unit_sreg
    a.e(f"""
    s_load_dwordx2 s[4:5], s[0:1], 16     ; wo
    s_load_dwordx4 s[28:31], s[0:1], 32
    s_load_dwordx2 s[32:33], s[0:1], 48   ; down
    s_load_dwordx2 s[24:25], s[0:1], 72
    v_lshrrev_b32 v1, 6, {tid}
    v_and_b32 v2, 63, {tid}
    v_bfe_u32 v4, v2, 2, 2               ; r
    v_lshrrev_b32 v5, 4, v2              ; gamma
    v_readfirstlane_b32 s34, v1          ; wave
    v_and_b32 v6, 3, v2                  ; c'
    v_lshl_add_u32 v4, v5, 3, v4         ; 8*gamma + r
    v_lshlrev_b32 v3, 4, v2              ; lane*16
    s_cmp_ge_u32 s{U}, 160
    s_cbranch_scc1 {LB}
    s_mul_i32 s35, s{U}, 6554
    s_lshr_b32 s35, s35, 16              ; sl = u/10
    s_mul_i32 s36, s35, 10
    s_sub_u32 s36, s{U}, s36             ; kb
    s_and_b32 s37, s35, 7
    s_mul_i32 s37, s37, 112
    s_min_u32 s37, s37, 752
    s_lshr_b32 s38, s35, 3
    s_mul_i32 s38, s38, 864
    s_add_u32 s37, s37, s38              ; f0
    s_lshl_b32 s37, s37, 1
    s_mul_i32 s38, s36, {64*3456}
    s_add_u32 s37, s37, s38              ; soffset
    s_and_b32 s39, s34, 1
    s_lshr_b32 s40, s34, 1
    s_mul_i32 s41, s39, {7*64}
    s_mul_i32 s42, s34, {7*1024}
    s_add_u32 s42, s42, s{lds_base_sreg}
    s_mov_b32 s43, {(1 << 32) // 14 + 1}
    s_waitcnt lgkmcnt(0)
    s_cmp_eq_u32 s40, 0
    s_cselect_b32 s8, s28, s30
    s_cselect_b32 s9, s29, s31
    s_and_b32 s9, s9, 0xffff
    s_mov_b32 s10, {D*F*2}
    s_mov_b32 s11, 0x20000
    """)
    srd(a, 16, 24, WS_BYTES)
    a.e("v_add_u32 v7, s41, v2")
    for n in range(7):
        a.e(f"""
        v_add_u32 v8, {64*n}, v7
        v_mul_hi_u32 v9, s43, v8
        v_mul_u32_u24 v10, {3456 - 14*16}, v9
        v_lshl_add_u32 v10, v8, 4, v10
        s_add_u32 m0, s42, {1024*n}
        s_nop 0
        buffer_load_dwordx4 v10, s[8:11], s37 offen lds
        """)
    a.e(f"""
    v_mul_u32_u24 v11, 224, v4
    s_mul_i32 s44, s39, 14336
    s_add_u32 s44, s44, s{lds_base_sreg}
    v_add_u32 v11, s44, v11
    v_lshl_add_u32 v12, v6, 3, v11
    s_lshl_b32 s45, s40, 3
    v_lshl_add_u32 v11, v6, 4, v11
    v_add_u32 v11, s45, v11
    v_mov_b32 v16, 0x3f803f80
    v_mov_b32 v17, 0x3f803f80
    v_mov_b32 v18, 0x3f803f80
    v_mov_b32 v19, 0x3f803f80
    s_mul_i32 s46, s35, {GU_SLICE}
    s_add_u32 s46, s46, {WGU_OFF}
    s_lshl_b32 s47, s34, 10
    s_add_u32 s46, s46, s47
    s_lshl_b32 s48, s36, 1
    s_cmp_ge_u32 s48, {CORR_POS}
    s_cselect_b32 s49, 1, 0
    s_add_u32 s48, s48, s49
    s_mul_i32 s48, s48, {14*1024}
    s_add_u32 s48, s48, s46
    s_add_u32 s49, s46, {CORR_POS*14*1024}
    v_and_b32 v13, 15, v2
    v_mul_u32_u24 v14, 10, v5
    v_add_u32 v14, s36, v14              ; slot
    v_lshrrev_b32 v15, 2, v14
    v_lshl_add_u32 v13, v15, 4, v13
    v_lshlrev_b32 v13, 4, v13
    v_and_b32 v15, 3, v14
    v_lshl_add_u32 v13, v15, 2, v13
    v_cmp_gt_u32 s[50:51], 16, v14
    v_cmp_gt_u32 s[52:53], 16, v2
    s_waitcnt vmcnt(0)
    s_barrier
    """)
    assert CORR_POS % 2 == 0
    for n in range(4):
        if n == 3:
            a.e(f"s_cmp_ge_u32 s34, 2\ns_cbranch_scc1 {L_done}")
        base = "v11" if n < 3 else "v12"
        co = 64 * n if n < 3 else 192
        R0 = 24 + 8 * (n & 1)
        for k2 in range(2):
            for hf in range(2):
                r = R0 + 4 * k2 + 2 * hf
                a.e(f"ds_read_b64_tr_b16 v[{r}:{r+1}], {base} offset:{(32*k2+4*hf)*224 + co}")
        a.e(f"""s_waitcnt lgkmcnt(0)
        s_add_u32 s54, s48, {4096*n}
        s_add_u32 s55, s54, {14*1024}
        s_add_u32 s56, s49, {4096*n}
        buffer_store_dwordx4 v[{R0}:{R0+3}], v3, s[16:19], s54 offen
        buffer_store_dwordx4 v[{R0+4}:{R0+7}], v3, s[16:19], s55 offen
        v_mfma_f32_16x16x32_bf16 v[40:43], v[16:19], v[{R0}:{R0+3}], 0
        v_mfma_f32_16x16x32_bf16 v[40:43], v[16:19], v[{R0+4}:{R0+7}], v[40:43]
        s_nop 7
        v_cvt_pk_bf16_f32 v44, v40, v40
        v_and_b32 v44, 0xffff0000, v44
        v_sub_f32 v44, v40, v44
        v_cvt_pk_bf16_f32 v44, v40, v44
        v_cndmask_b32 v{45+n}, 0, v44, s[52:53]
        s_mov_b64 exec, s[50:51]
        buffer_store_dword v{45+n}, v13, s[16:19], s56 offen
        s_mov_b64 exec, -1
        """)
    a.e(f"s_branch {L_done}")
    a.e(f"""
    {LB}:
    s_sub_u32 s35, s{U}, 160
    s_waitcnt lgkmcnt(0)
    s_mov_b32 s10, {D*F*2}
    s_mov_b32 s38, {WD_OFF}
    s_cmp_lt_u32 s35, 40
    s_cselect_b32 s8, s4, s32
    s_cselect_b32 s9, s5, s33
    s_cselect_b32 s10, {D*D*2}, s10
    s_cselect_b32 s36, 0, 40
    s_cselect_b32 s37, 20, 54            ; NK
    s_cselect_b32 s38, {WO_OFF}, s38
    s_and_b32 s9, s9, 0xffff
    s_mov_b32 s11, 0x20000
    s_sub_u32 s35, s35, s36
    s_lshr_b32 s39, s35, 1               ; ks
    s_and_b32 s40, s35, 1                ; half
    s_mul_i32 s41, s39, {32*1280}
    s_mul_i32 s42, s40, 640
    s_add_u32 s41, s41, s42              ; soffset
    s_mul_i32 s42, s34, {5*1024}
    s_add_u32 s42, s42, s{lds_base_sreg}
    s_mul_i32 s44, s34, {5*64}
    s_mov_b32 s43, {(1 << 32) // 40 + 1}
    v_add_u32 v7, s44, v2
    """)
    srd(a, 16, 24, WS_BYTES)
    for n in range(5):
        a.e(f"""
        v_add_u32 v8, {64*n}, v7
        v_mul_hi_u32 v9, s43, v8
        v_mul_u32_u24 v10, {1280 - 40*16}, v9
        v_lshl_add_u32 v10, v8, 4, v10
        s_add_u32 m0, s42, {1024*n}
        s_nop 0
        buffer_load_dwordx4 v10, s[8:11], s41 offen lds
        """)
    a.e(f"""
    v_mul_u32_u24 v11, 640, v4
    s_mul_i32 s44, s34, 160
    s_add_u32 s44, s44, s{lds_base_sreg}
    v_add_u32 v11, s44, v11
    v_lshl_add_u32 v12, v6, 3, v11
    v_lshl_add_u32 v11, v6, 4, v11
    s_lshl_b32 s45, s40, 2
    s_add_u32 s45, s45, s34              ; slice
    s_mul_i32 s45, s45, s37
    s_add_u32 s45, s45, s39
    s_mul_i32 s45, s45, 5120
    s_add_u32 s45, s45, s38
    s_add_u32 s46, s45, 4096
    s_waitcnt vmcnt(0)
    s_barrier
    """)
    for Tt in range(5):
        base = "v11" if Tt < 4 else "v12"
        co = 64 * (Tt >> 1) + 8 * (Tt & 1) if Tt < 4 else 128
        for hf in range(2):
            r = 24 + 4 * Tt + 2 * hf
            a.e(f"ds_read_b64_tr_b16 v[{r}:{r+1}], {base} offset:{4*hf*640 + co}")
    a.e("s_waitcnt lgkmcnt(0)")
    for Tt in range(5):
        r = 24 + 4 * Tt
        if Tt < 4: a.e(f"buffer_store_dwordx4 v[{r}:{r+3}], v3, s[16:19], s45 offen offset:{1024*Tt}")
        else: a.e(f"buffer_store_dwordx4 v[{r}:{r+3}], v3, s[16:19], s46 offen")

def gen_kr(a, name="kr_kernel"):
    a.begin_kernel(name)
    L_end = f"{name}_end"
    a.e(f"s_cmp_ge_u32 s2, {KR_UNITS}\ns_cbranch_scc1 {L_end}\ns_mov_b32 s3, 0")
    gen_r_body(a, name, 2, 3, L_end)
    a.e(f"{L_end}:\ns_endpgm")
    a.end_kernel(name, 64, 102)
    a.launch(name, KR_UNITS, 256, KR_LDS)
```

```python
from common import *
class Stream:
    def __init__(self, a, nfrag, nslot, srdw, v_lin, v_rd, s_wbase, s_lds, s_wave, wreg0, nwreg=8, pd=6, look=80, maxout=60):
        self.a = a; self.nfrag = nfrag; self.nslot = nslot; self.srdw = srdw
        self.v_lin = v_lin; self.v_rd = v_rd
        self.s_wbase = s_wbase; self.s_lds = s_lds; self.s_wave = s_wave
        self.wreg0 = wreg0; self.nwreg = nwreg; self.pd = pd; self.look = look; self.maxout = maxout
        self.nstage = (nfrag + 15) // 16
        self.items = []
        self.issued = []
        self.bar = -1
        self.done_upto = 0
    def add_item(self, need, key, text):
        self.items.append((need, key, text))
    def dma_items(self, need_of_stage_):
        needs = []
        for st in range(self.nstage):
            needs.append(max(need_of_stage_(st), needs[-1] + 0.05) if needs else need_of_stage_(st))
        need_of_stage = lambda st: needs[st]
        for st in range(self.nstage):
            rem = min(16, self.nfrag - 16 * st)
            cnt = (rem + 3) // 4
            slot = (st % self.nslot) * 16384
            for q in range(cnt):
                t = ""
                if q == 0:
                    if cnt == 4:
                        t = f"s_add_u32 m0, s{self.s_lds}, {slot}\ns_add_u32 s70, s{self.s_wbase}, {st*16384}\n"
                    else:
                        t = (f"s_mul_i32 s71, s{self.s_wave}, {(4-cnt)*1024}\ns_sub_u32 s70, s{self.s_lds}, s71\ns_add_u32 m0, s70, {slot}\n"
                             f"s_sub_u32 s70, s{self.s_wbase}, s71\ns_add_u32 s70, s70, {st*16384}\n")
                t += f"buffer_load_dwordx4 v{self.v_lin}, s[{self.srdw}:{self.srdw+3}], s70 offen offset:{1024*q} lds"
                self.items.append((need_of_stage(st) + 0.01 * q, ("dma", st, q), t))
    def finalize_items(self):
        self.items.sort(key=lambda x: x[0])
        self.ptr = 0
    def can_issue(self, it, now):
        need, key, text = it
        if need > now + self.look: return False
        if key[0] == "dma" and key[1] >= self.nslot and self.bar < key[1] - self.nslot + 2: return False
        if len(self.issued) - self.done_upto >= self.maxout: return False
        return True
    def take(self, now, maxn):
        out = []
        while maxn > 0 and self.ptr < len(self.items) and self.can_issue(self.items[self.ptr], now):
            it = self.items[self.ptr]; self.ptr += 1
            self.issued.append(it[1]); out.append(it[2]); maxn -= 1
        return out
    def force(self, pred):
        out = []
        last = max([i for i in range(len(self.items)) if pred(self.items[i][1])], default=-1)
        while self.ptr <= last:
            it = self.items[self.ptr]
            key = it[1]
            assert not (key[0] == "dma" and key[1] >= self.nslot and self.bar < key[1] - self.nslot + 2), "slot not free"
            if len(self.issued) - self.done_upto >= 63:
                out.append("s_waitcnt vmcnt(40)"); self.done_upto = len(self.issued) - 40
            self.ptr += 1
            self.issued.append(key); out.append(it[2])
        return out
    def extra(self, key, text):
        self.issued.append(key); return text
    def wait_for(self, pred):
        out = self.force(pred)
        idx = max([i for i, k in enumerate(self.issued) if pred(k)], default=-1)
        if idx + 1 > self.done_upto:
            n = len(self.issued) - (idx + 1)
            assert n <= 63
            out.append(f"s_waitcnt vmcnt({n})")
            self.done_upto = idx + 1
        return out
    def wreg(self, ci):
        return self.wreg0 + 4 * (ci % self.nwreg)
    def read(self, ci, pos):
        out = []
        st = pos // 16
        if st > self.bar:
            out += self.wait_for(lambda k: k[0] == "dma" and k[1] <= st)
            out.append("s_barrier")
            self.bar = st
        addr = (st % self.nslot) * 16384 + (pos % 16) * 1024
        r = self.wreg(ci)
        out.append(f"ds_read_b128 v[{r}:{r+3}], v{self.v_rd[addr >> 16]} offset:{addr & 65535}")
        return out
    def run(self, order, mf, xneed, fill=None, rate=100, pre=None, look0=None):
        a = self.a; n = len(order); pd = self.pd
        lk = self.look
        if look0 is not None: self.look = look0
        for x in self.take(0, 1000): a.e(x)
        self.look = lk
        credit = 0
        if pre: pre()
        for ci in range(min(pd, n)):
            for x in self.read(ci, order[ci]): a.e(x)
        for ci in range(n):
            p = xneed(ci)
            if p:
                for x in self.wait_for(p): a.e(x)
            outstanding = min(pd, n - ci) - 1
            a.e(f"s_waitcnt lgkmcnt({outstanding})")
            ms = mf(ci, self.wreg(ci))
            post = []
            if ci + pd < n: post += self.read(ci + pd, order[ci + pd])
            credit = min(credit + rate, 200)
            tk = self.take(ci, credit // 100)
            credit -= 100 * len(tk)
            post += tk
            if fill: post += fill(ci)
            for x in interleave(ms, post): a.e(x)
```

```python
import sys
from common import *
from k1 import gen_k1
from k2 import gen_k2
from kr import gen_kr
from k35 import gen_k35
from k4 import gen_k4
stamps = "--stamps" in sys.argv
opts = {}
for x in sys.argv[1:]:
    if x.startswith("--") and "=" in x:
        k, v = x[2:].split("="); opts[k] = int(v)
a = Asm()
def sub(prefix): return {k[len(prefix):]: v for k, v in opts.items() if k.startswith(prefix)}
gen_kr(a)
gen_k1(a, stamps=stamps, kidx=0, **sub("k1_"))
gen_k2(a, stamps=stamps, kidx=1, **sub("k2_"))
gen_k35(a, 3, stamps=stamps, kidx=2, **sub("k3_"))
gen_k4(a, stamps=stamps, kidx=3, **sub("k4_"))
gen_k35(a, 5, stamps=stamps, kidx=4, **sub("k5_"))
out = [x for x in sys.argv[1:] if not x.startswith("--")][0]
hdr = open("sequential_preLN__sliding_block__glu_gated_reglu__prompt.s.ref").read().split("; Override")[0].rstrip() if "--final" in sys.argv else "; generated"
open(out, "w").write(a.text(hdr))
```

```python
import re
REG = re.compile(r"(?<![\w.])(-?\|?)([vas])(?:(\d+)|\[(\d+):(\d+)\])")
TRANS = ("v_exp_", "v_log_", "v_rcp_", "v_rsq_", "v_sqrt_", "v_sin_", "v_cos_")
def regs_of(tok):
    out = set()
    t = tok.strip()
    if t in ("vcc",): return {("s", "vcc_lo"), ("s", "vcc_hi")}
    if t in ("vcc_lo", "vcc_hi", "m0", "exec_lo", "exec_hi"): return {("s", t)}
    if t == "exec": return {("s", "exec_lo"), ("s", "exec_hi")}
    m = REG.match(t)
    if m:
        k = m.group(2)
        if m.group(3) is not None: rng = [int(m.group(3))]
        else: rng = range(int(m.group(4)), int(m.group(5)) + 1)
        for r in rng: out.add((k, r))
    return out
def passes(op):
    if "32x32x16" in op or "32x32x8" in op: return 8
    if "16x16x32" in op or "16x16x16" in op: return 4
    if "4x4x4" in op: return 2
    raise ValueError(op)
class I:
    __slots__ = ("text", "op", "w", "r", "kind", "c", "ab", "ws", "label", "target", "dpp", "data")
    def __init__(s, text):
        s.text = text; s.w = set(); s.r = set(); s.c = set(); s.ab = set(); s.ws = 1; s.label = None; s.target = None
        s.dpp = False; s.data = set()
        body = text.split(";")[0].strip()
        if body.endswith(":"):
            s.label = body[:-1]; s.kind = "label"; s.ws = 0; s.op = ""; return
        if body.startswith("."):
            s.kind = "dir"; s.ws = 0; s.op = ""; return
        parts = body.split(None, 1)
        op = s.op = parts[0]
        rest = parts[1] if len(parts) > 1 else ""
        toks = [x.strip() for x in rest.split(",")] if rest else []
        ops = []
        for t in toks:
            ops.append(t.split()[0] if t.split() else t)
        R = [regs_of(t) for t in ops]
        if op.startswith("v_mfma"):
            s.kind = "mfma"; s.w = R[0]; s.ab = R[1] | R[2]; s.c = R[3]; s.r = s.ab | s.c
        elif op.startswith("v_"):
            s.kind = "valu"
            s.dpp = ("row_" in rest or "quad_perm" in rest or "wave_" in rest)
            if "permlane" in op and "swap" in op:
                s.w = R[0] | R[1]; s.r = R[0] | R[1]
            elif op.startswith("v_nop"): pass
            else:
                s.w = set(R[0]); k = 1
                if "_co_" in op: s.w |= R[1]; k = 2
                for x in R[k:]: s.r |= x
                if op.startswith(("v_fmac", "v_mac", "v_dot2c", "v_pk_fmac", "v_writelane")) or s.dpp: s.r |= R[0]
                if op.startswith("v_cmpx"): s.w |= regs_of("exec")
        elif op.startswith("ds_"):
            s.kind = "ds"
            if op.startswith(("ds_read", "ds_bpermute", "ds_permute", "ds_swizzle")) or "_rtn" in op:
                s.w = R[0]
                for x in R[1:]: s.r |= x
            else:
                for x in R: s.r |= x
        elif op.startswith(("buffer_", "global_")):
            s.kind = "vmem"
            if op.startswith(("buffer_wbl2", "buffer_inv")): pass
            elif " lds" in " " + rest and "load" in op:
                for x in R: s.r |= x
                s.r |= {("s", "m0")}; s.kind = "dma"
            elif "load" in op:
                s.w = R[0]
                for x in R[1:]: s.r |= x
            else:
                for x in R: s.r |= x
                if "x3" in op or "x4" in op: s.data = R[0] if op.startswith("buffer") else R[1]
                if "atomic" in op and " sc0" in " " + rest: s.w = R[0]
        elif op.startswith("s_"):
            s.kind = "salu"
            if op == "s_nop": s.ws = int(rest, 0) + 1
            elif op.startswith(("s_cbranch", "s_branch")): s.target = rest.strip()
            elif op == "s_call_b64": s.target = ops[1]; s.w = R[0]
            elif op.startswith(("s_cmp", "s_bitcmp", "s_waitcnt", "s_barrier", "s_setprio", "s_sleep", "s_endpgm", "s_setpc")):
                for x in R: s.r |= x
            else:
                s.w = set(R[0])
                for x in R[1:]: s.r |= x
                if "saveexec" in op: s.w |= regs_of("exec")
        else:
            raise ValueError("unknown instr: " + text)
    def V(s, x): return {r for r in x if r[0] in "va"}
    def S(s, x): return {r for r in x if r[0] == "s"}
def need(p, c):
    n = 0
    if p.kind == "valu":
        wv = p.V(p.w); wsg = p.S(p.w)
        if c.kind == "mfma" and wv & c.r: n = max(n, 2)
        if c.kind == "valu":
            if wv & c.r:
                if c.dpp or "permlane" in c.op: n = max(n, 2)
                if c.op.startswith(("v_readfirstlane", "v_readlane")): n = max(n, 1)
                if p.op.startswith(TRANS) and not c.op.startswith(TRANS): n = max(n, 1)
            if wsg & c.r:
                n = max(n, 4 if c.op.startswith(("v_readlane", "v_writelane")) else 2)
            if ("s", "exec_lo") in wsg:
                if c.dpp: n = max(n, 5)
                if c.op.startswith(("v_readfirstlane", "v_readlane", "v_writelane")) or "permlane" in c.op: n = max(n, 4)
        if c.kind == "mfma" and ("s", "exec_lo") in wsg: n = max(n, 4)
        if c.kind in ("vmem", "dma") and wsg & c.r: n = max(n, 5)
        if c.kind == "salu" and wsg & c.r: n = max(n, 1)
        if p.op.startswith(TRANS) and c.kind in ("vmem", "ds", "mfma") and wv & c.r: n = max(n, 2 if c.kind == "mfma" else 1)
    elif p.kind == "mfma":
        P = passes(p.op)
        ov = {2: 4, 4: 6, 8: 10}[P]; rd = {2: 5, 4: 8, 8: 12}[P]; war = {2: 1, 4: 3, 8: 7}[P]
        if c.kind == "mfma":
            if p.w & c.ab: n = max(n, rd)
            if p.w & c.c:
                if p.w == c.c and passes(c.op) == P: n = max(n, 2 if P == 2 else 0)
                else: n = max(n, ov)
            elif p.w & c.w: n = max(n, ov)
        elif c.kind in ("valu", "ds", "vmem", "dma"):
            if p.w & (c.r | c.w): n = max(n, rd)
            if c.kind == "valu" and p.c & c.w: n = max(n, war)
    elif p.kind == "vmem":
        if p.data & c.w: n = max(n, 2 if c.kind in ("valu", "mfma") else 1)
    elif p.kind == "salu":
        if ("s", "m0") in p.w and c.kind == "dma": n = max(n, 1)
    return n
MAXD = 13
class Asm:
    def __init__(self):
        self.ins = []
        self._lab = 0
        self.nops = 0
    def e(self, s):
        if isinstance(s, (list, tuple)):
            for x in s: self.e(x)
            return
        for ln in s.split("\n"):
            ln = ln.strip()
            if ln and not ln.startswith(";"):
                self.ins.append(I(ln))
    def label(self, base="L"):
        self._lab += 1
        return f"{base}_{self._lab}"
    def _deficit(self, hist, c):
        d = 0; worst = 0
        for p in reversed(hist):
            if d >= MAXD: break
            if p.kind not in ("label", "dir"):
                k = need(p, c) - d
                if k > worst: worst = k
            d += p.ws
        return worst
    def finalize(self):
        out = []
        for c in self.ins:
            if c.kind not in ("label", "dir"):
                h = []
                for p in reversed(out[-40:]):
                    if p.op in ("s_branch", "s_endpgm", "s_setpc_b64"): break
                    h.append(p)
                h.reverse()
                k = self._deficit(h, c)
                if k > 0:
                    while k > 0:
                        q = min(k, 8); out.append(I(f"s_nop {q-1}")); k -= q; self.nops += 1
            out.append(c)
        changed = True
        while changed:
            changed = False
            pos = {x.label: i for i, x in enumerate(out) if x.label}
            for i, b in enumerate(out):
                if not b.target: continue
                h = []
                for p in reversed(out[max(0, i - 40):i]):
                    if p.op in ("s_branch", "s_endpgm", "s_setpc_b64"): break
                    h.append(p)
                h.reverse(); h.append(b)
                j = pos[b.target]; d = 0; worst = 0; n0 = len(h)
                while j < len(out) and d < MAXD:
                    c = out[j]
                    if c.kind not in ("label", "dir"):
                        dd = d;
                        for p in reversed(h[:n0]):
                            if dd >= MAXD: break
                            if p.kind not in ("label", "dir"):
                                worst = max(worst, need(p, c) - dd)
                            dd += p.ws
                        d += c.ws
                        if c.op in ("s_branch", "s_endpgm", "s_setpc_b64"): break
                    j += 1
                if worst > 0:
                    out.insert(i, I(f"s_nop {min(worst,8)-1}")); self.nops += 1
                    changed = True
                    break
        self.out = out
        return out
    def text(self, name, header, launch, vgpr=256, sgpr=102, accum=256):
        out = self.finalize()
        L = [header, launch, '.amdgcn_target "amdgcn-amd-amdhsa--gfx950"', ".text", f".globl {name}", ".p2align 8", f".type {name},@function", f"{name}:"]
        for x in out:
            L.append(x.text if x.kind == "label" else "    " + x.text)
        L.append('.section .rodata,"a"')
        L.append(f""".p2align 6
.amdhsa_kernel {name}
  .amdhsa_next_free_vgpr {vgpr}
  .amdhsa_next_free_sgpr {sgpr}
  .amdhsa_accum_offset {accum}
  .amdhsa_group_segment_fixed_size 0
  .amdhsa_kernarg_size 80
  .amdhsa_user_sgpr_count 2
  .amdhsa_user_sgpr_kernarg_segment_ptr 1
  .amdhsa_system_sgpr_workgroup_id_x 1
.end_amdhsa_kernel""")
        return "\n".join(L) + "\n"
def srd(a, d, b, nbytes):
    a.e(f"""s_mov_b32 s{d}, s{b}
    s_and_b32 s{d+1}, s{b+1}, 0xffff
    s_mov_b32 s{d+2}, {nbytes}
    s_mov_b32 s{d+3}, 0x20000""")
def interleave(main, fill):
    out = []; n = len(main); k = 0
    for i, m in enumerate(main):
        out.append(m)
        tgt = ((i + 1) * len(fill) + n - 1) // n
        while k < tgt:
            out.append(fill[k]); k += 1
    return out
```

```python
from asm2 import *
import struct, math
T = 2048; D = 640; F = 1728
MB = 1 << 20
FL_OFF = 0
EPOCH = FL_OFF; HELLO = FL_OFF + 1024; F1 = FL_OFF + 2048; FH = FL_OFF + 8192; F2 = FL_OFF + 12288
F3 = FL_OFF + 20480; F4 = FL_OFF + 24576; RF_WO = FL_OFF + 40960; RF_WD = RF_WO + 512; RF_GU = RF_WD + 1024
ST1 = FL_OFF + 49152
FHD = FL_OFF + 45056
CS_OFF = 256 << 10
import sys as _sys
ALIAS = "--alias=1" in _sys.argv or "alias" in _sys.argv
QKV_OFF = 1 * MB;  QKV_BLK = 640 * 1024
if ALIAS: O_CH, H_CH, ACT_CH, ST2_CH = 0, 80, [160, 0, 240, 304], 336
else: O_CH, H_CH, ACT_CH, ST2_CH = 240, 320, [400, 464, 528, 592], 624
O_OFF = QKV_OFF + O_CH * 1024; O_BLK = QKV_BLK
WO_OFF = 27 * MB
WD_OFF = 28 * MB
WGU_OFF = 31 * MB; GU_SLICE = 280 * 1024
STAMP_OFF = 40 * MB
WS_BYTES = 64 * MB
TAGC = 0x9E3779B1
SPIN = 30000
WAVE = 3; SX = 4; SWQ = 8; SWS = 12; SOUT = 16; SRS = 20
G = 24; TT = 25; TAG = 26; MODE = 27; XCC = 28
def sr(b): return f"s[{b}:{b+3}]"
def vr(b, n=4): return f"v[{b}:{b+n-1}]"
def f32bits(x): return struct.unpack("<I", struct.pack("<f", x))[0]
def f0_of(sl): return 864 * (sl >> 3) + 112 * (sl & 7)
def wd_rows(j):
    if j < 16: r = f0_of(j); return r, r + 16
    if j < 32: r = f0_of(j - 16) + 32; return r, r + 16
    if j < 46:
        i = j - 32; sl = i if i < 7 else i + 1
        r = f0_of(sl) + 64; return r, r + 16
    i = j - 46
    def lastoff(sl): return f0_of(sl) + (64 if (sl & 7) == 7 else 96)
    return lastoff(2 * i), lastoff(2 * i + 1)
class Ctx:
    stamps = False
    nst = 0
def stamp(a, C, idx):
    if C.stamps:
        assert idx < 16
        a.e(f"s_memrealtime s[{64+2*idx}:{65+2*idx}]")
        if idx == getattr(C, "c0", 0): a.e("s_memtime s[96:97]")
        if idx == getattr(C, "c1", 15): a.e("s_memtime s[98:99]")
def lane(a, v):
    a.e(f"v_mbcnt_lo_u32_b32 v{v}, -1, 0\nv_mbcnt_hi_u32_b32 v{v}, -1, v{v}")
def publish(a, soff, vtmp, wait="vmcnt(0)", force_sc1=False):
    a.e(f"v_mov_b32 v{vtmp}, s{TAG}")
    a.e(f"s_waitcnt {wait}")
    a.e("s_mov_b64 exec, 1")
    if force_sc1:
        a.e(f"buffer_store_dword v{vtmp}, off, {sr(SWS)}, s{soff} sc1")
    else:
        Lf = a.label("pf"); Ld = a.label("pd")
        a.e(f"""s_cmp_eq_u32 s{MODE}, 0
        s_cbranch_scc1 {Lf}
        buffer_wbl2 sc1
        s_waitcnt vmcnt(0)
        buffer_store_dword v{vtmp}, off, {sr(SWS)}, s{soff} sc1
        s_branch {Ld}
        {Lf}:
        buffer_store_dword v{vtmp}, off, {sr(SWS)}, s{soff}
        {Ld}:""")
    a.e("s_mov_b64 exec, -1")
def poll(a, vaddr, soff, vtmp, scnt, inv=True, pre=False):
    Lp = a.label("pl"); Lc = a.label("pc"); Ld = a.label("pdn")
    a.e(f"s_mov_b32 s{scnt}, {SPIN}")
    if pre: a.e(f"s_branch {Lc}")
    a.e(f"""{Lp}:
    buffer_load_dword v{vtmp}, v{vaddr}, {sr(SWS)}, s{soff} offen sc1
    {Lc}:
    s_waitcnt vmcnt(0)
    v_cmp_ne_u32 vcc, s{TAG}, v{vtmp}
    s_cmp_eq_u64 vcc, 0
    s_cbranch_scc1 {Ld}
    s_sleep 1
    s_sub_u32 s{scnt}, s{scnt}, 1
    s_cbranch_scc0 {Lp}
    {Ld}:""")
    if inv:
        Lf = a.label("pi")
        a.e(f"""s_cmp_eq_u32 s{MODE}, 0
        s_cbranch_scc1 {Lf}
        buffer_inv sc1
        s_waitcnt vmcnt(0)
        {Lf}:""")
def hello_addr(a, v, vlane, soff):
    a.e(f"""v_and_b32 v{v}, 31, v{vlane}
    v_lshlrev_b32 v{v}, 2, v{v}
    s_lshl_b32 s{soff}, s{G}, 7
    s_add_u32 s{soff}, s{soff}, {HELLO}""")
def get_mode(a, C, vaddr, soff, vtmp, scnt, pre=False):
    Lp = a.label("ml"); Lc = a.label("mc"); Ld = a.label("md")
    a.e(f"s_mov_b32 s{scnt}, {SPIN}")
    if pre: a.e(f"s_branch {Lc}")
    a.e(f"""{Lp}:
    buffer_load_dword v{vtmp}, v{vaddr}, {sr(SWS)}, s{soff} offen sc1
    {Lc}:
    s_waitcnt vmcnt(0)
    v_subrev_u32 v{vtmp}, s{TAG}, v{vtmp}
    v_cmp_lt_u32 vcc, 15, v{vtmp}
    s_cmp_eq_u64 vcc, 0
    s_cbranch_scc1 {Ld}
    s_sleep 1
    s_sub_u32 s{scnt}, s{scnt}, 1
    s_cbranch_scc0 {Lp}
    {Ld}:
    v_cmp_ne_u32 vcc, s{XCC}, v{vtmp}
    s_cmp_lg_u64 vcc, 0
    s_cselect_b32 s{MODE}, 1, {1 if getattr(C, 'slow', 0) else 0}""")
```

```python
from pc import *
R_LDS = 131072
X_LDS = 131072 + 28672
def allreduce32(a, s, t):
    for r in (8, 4, 2, 1):
        a.e(f"v_add_f32_dpp v{s}, v{s}, v{s} row_ror:{r} row_mask:0xf bank_mask:0xf")
    a.e(f"v_mov_b32 v{t}, v{s}\nv_permlane16_swap_b32 v{s}, v{t}\nv_add_f32 v{s}, v{s}, v{t}")
def bf16r(a, v):
    a.e(f"v_cvt_pk_bf16_f32 v{v}, v{v}, v{v}\nv_and_b32 v{v}, 0xffff0000, v{v}")
def stats_issue(a):
    a.e(f"""
    s_lshl_b32 s40, s{G}, 8
    s_lshl_b32 s41, s{TT}, 3
    s_add_u32 s40, s40, s41
    s_lshl_b32 s41, s{WAVE}, 1
    s_add_u32 s40, s40, s41              ; row0
    s_mul_i32 s41, s40, 1280
    v_lshrrev_b32 v210, 5, v2
    v_and_b32 v211, 31, v2
    v_mul_u32_u24 v212, 1280, v210
    v_lshl_add_u32 v213, v211, 4, v212
    v_lshl_add_u32 v212, v211, 3, v212
    buffer_load_dwordx4 v[200:203], v213, {sr(SX)}, s41 offen
    buffer_load_dwordx4 v[204:207], v213, {sr(SX)}, s41 offen offset:512
    buffer_load_dwordx2 v[208:209], v212, {sr(SX)}, s41 offen offset:1024
    """)
def stats_finish(a, nl=0):
    U = 216
    a.e(f"s_waitcnt vmcnt({nl})")
    for q in range(10):
        a.e(f"v_lshlrev_b32 v{U+2*q}, 16, v{200+q}\nv_and_b32 v{U+2*q+1}, 0xffff0000, v{200+q}")
    a.e(f"v_add_f32 v200, v{U}, v{U+1}\nv_add_f32 v201, v{U+2}, v{U+3}")
    for e in range(4, 20): a.e(f"v_add_f32 v{200+(e&1)}, v{200+(e&1)}, v{U+e}")
    a.e("v_add_f32 v200, v200, v201")
    allreduce32(a, 200, 201)
    a.e(f"v_mul_f32 v200, {f32bits(1.0/640)}, v200")
    for e in range(20): a.e(f"v_sub_f32 v{U+e}, v{U+e}, v200")
    a.e(f"v_mul_f32 v202, v{U}, v{U}\nv_mul_f32 v203, v{U+1}, v{U+1}")
    for e in range(2, 20): a.e(f"v_fmac_f32 v{202+(e&1)}, v{U+e}, v{U+e}")
    a.e("v_add_f32 v202, v202, v203")
    allreduce32(a, 202, 203)
    a.e(f"v_mul_f32 v202, {f32bits(1.0/640)}, v202")
    bf16r(a, 202)
    a.e(f"v_add_f32 v202, {f32bits(1e-5)}, v202")
    bf16r(a, 202)
    a.e(f"""v_sqrt_f32 v202, v202
    v_cvt_pk_bf16_f32 v204, -v200, v202
    v_lshlrev_b32 v206, 3, v210
    s_lshl_b32 s41, s40, 3
    s_add_u32 s41, s41, {ST1}
    s_waitcnt lgkmcnt(0)
    s_add_u32 s{TAG}, s{TAG}, 1
    s_mul_i32 s{TAG}, s{TAG}, {TAGC}
    v_mov_b32 v205, s{TAG}
    s_mov_b32 exec_lo, 1
    s_mov_b32 exec_hi, 1
    buffer_store_dwordx2 v[204:205], v206, {sr(SWS)}, s41 offen sc1
    s_mov_b64 exec, -1
    """)
def hello(a):
    L = a.label("nohello")
    a.e(f"""s_cmp_lg_u32 s{WAVE}, 0
    s_cbranch_scc1 {L}
    s_add_u32 s41, s{TAG}, s{XCC}
    v_mov_b32 v207, s41
    s_lshl_b32 s41, s{G}, 7
    s_lshl_b32 s42, s{TT}, 2
    s_add_u32 s41, s41, s42
    s_add_u32 s41, s41, {HELLO}
    s_mov_b64 exec, 1
    buffer_store_dword v207, off, {sr(SWS)}, s41 sc1
    s_mov_b64 exec, -1
    {L}:""")

RT = 29
def r_decA(a):
    a.e(f"""
    s_sub_u32 s48, s{RT}, 296
    s_mul_i32 s49, s48, 6554
    s_lshr_b32 s49, s49, 16              ; mt*16+sl
    s_mul_i32 s50, s49, 10
    s_sub_u32 s50, s48, s50              ; kb
    s_lshr_b32 s51, s49, 4               ; mt
    s_and_b32 s49, s49, 15               ; sl
    s_and_b32 s52, s49, 7""")
def r_decB(a):
    a.e(f"""
    s_cmp_lt_u32 s{RT}, 80
    s_cselect_b32 s48, 0, 80
    s_cselect_b32 s51, 20, 54            ; NK
    s_cselect_b32 s52, 1, 0
    s_sub_u32 s48, s{RT}, s48
    s_lshr_b32 s49, s48, 2               ; j
    s_and_b32 s50, s48, 3                ; quarter""")
def r_issue(a, vl, vt):
    LB = a.label("rib"); Ld = a.label("rid")
    a.e(f"s_cmp_lt_u32 s{RT}, 296\ns_cbranch_scc1 {LB}")
    r_decA(a)
    a.e(f"""
    s_mul_i32 s53, s52, 224
    s_lshr_b32 s54, s49, 3
    s_mul_i32 s54, s54, 1728
    s_add_u32 s53, s53, s54              ; f0*2
    s_mul_i32 s54, s50, {64*3456}
    s_add_u32 s53, s53, s54
    s_add_u32 s54, s53, {32*3456}
    s_cmp_eq_u32 s51, 0
    s_cselect_b32 s{SRS}, s32, s34
    s_cselect_b32 s{SRS+1}, s33, s35
    s_and_b32 s{SRS+1}, s{SRS+1}, 0xffff
    s_mov_b32 s{SRS+2}, {D*F*2}
    s_mov_b32 s55, {(1 << 32) // 14 + 1}
    """)
    for n in range(7):
        a.e(f"""v_add_u32 v{vt}, {64*n}, v{vl}
        v_mul_hi_u32 v{vt+1}, s55, v{vt}
        v_mul_u32_u24 v{vt+1}, {3456 - 14*16}, v{vt+1}
        v_lshl_add_u32 v{vt+1}, v{vt}, 4, v{vt+1}
        s_add_u32 m0, s47, {1024*n}
        buffer_load_dwordx4 v{vt+1}, {sr(SRS)}, s53 offen lds
        s_add_u32 m0, s47, {1024*(n+7)}
        buffer_load_dwordx4 v{vt+1}, {sr(SRS)}, s54 offen lds""")
    a.e(f"s_branch {Ld}\n{LB}:")
    r_decB(a)
    a.e(f"""
    s_cmp_eq_u32 s52, 1
    s_cselect_b32 s{SRS}, s30, s36
    s_cselect_b32 s{SRS+1}, s31, s37
    s_mov_b32 s{SRS+2}, {D*F*2}
    s_cselect_b32 s{SRS+2}, {D*D*2}, s{SRS+2}
    s_and_b32 s{SRS+1}, s{SRS+1}, 0xffff
    s_and_b32 s53, s49, 15
    s_lshr_b32 s54, s49, 4
    s_cmp_ge_u32 s49, 39
    s_cselect_b32 s55, 1, 0
    s_add_u32 s53, s53, s55
    s_sub_u32 s55, s49, 46
    s_lshl_b32 s55, s55, 1
    s_cmp_ge_u32 s49, 46
    s_cselect_b32 s53, s55, s53          ; slice A
    s_cselect_b32 s54, 3, s54
    s_cselect_b32 s56, 112, 16           ; rowB-rowA
    s_and_b32 s55, s53, 7
    s_mul_i32 s57, s55, 112
    s_lshr_b32 s53, s53, 3
    s_mul_i32 s53, s53, 864
    s_add_u32 s53, s53, s57
    s_lshl_b32 s54, s54, 5
    s_add_u32 s53, s53, s54              ; rowA
    s_cmp_eq_u32 s55, 6
    s_cselect_b32 s57, 80, s56
    s_min_u32 s56, s56, s57
    s_lshl_b32 s57, s49, 5
    s_cmp_eq_u32 s52, 1
    s_cselect_b32 s53, s57, s53
    s_add_u32 s54, s53, s56
    s_mul_i32 s57, s50, 320
    s_mul_i32 s53, s53, 1280
    s_mul_i32 s54, s54, 1280
    s_add_u32 s53, s53, s57
    s_add_u32 s54, s54, s57
    s_mov_b32 s55, {(1 << 32) // 20 + 1}
    """)
    for n in range(5):
        a.e(f"""v_add_u32 v{vt}, {64*n}, v{vl}
        v_mul_hi_u32 v{vt+1}, s55, v{vt}
        v_mul_u32_u24 v{vt+1}, {1280 - 20*16}, v{vt+1}
        v_lshl_add_u32 v{vt+1}, v{vt}, 4, v{vt+1}
        s_add_u32 m0, s47, {1024*n}
        buffer_load_dwordx4 v{vt+1}, {sr(SRS)}, s53 offen lds
        s_add_u32 m0, s47, {1024*(n+5)}
        buffer_load_dwordx4 v{vt+1}, {sr(SRS)}, s54 offen lds""")
    a.e(f"{Ld}:")
def r_finish(a, vl, B):
    LB = a.label("rfb"); Ld = a.label("rfd")
    m = B; ON = B + 8; R_ = B + 12; CC = B + 68
    a.e(f"""
    v_bfe_u32 v{m}, v{vl}, 2, 2
    v_lshrrev_b32 v{m+1}, 4, v{vl}
    v_and_b32 v{m+2}, 3, v{vl}                 ; c'
    v_lshl_add_u32 v{m}, v{m+1}, 3, v{m}       ; 8*gamma + r
    v_lshlrev_b32 v{m+1}, 4, v{vl}             ; lane*16
    s_cmp_lt_u32 s{RT}, 296
    s_cbranch_scc1 {LB}""")
    r_decA(a)
    a.e(f"""
    v_mul_u32_u24 v{m+3}, 224, v{m}
    v_add_u32 v{m+3}, s47, v{m+3}
    s_cmp_eq_u32 s52, 7
    s_cselect_b32 s55, 0, 64
    s_add_u32 s55, s55, 128
    v_lshl_add_u32 v{m+4}, v{m+2}, 3, v{m+3}
    v_add_u32 v{m+4}, s55, v{m+4}
    v_lshl_add_u32 v{m+3}, v{m+2}, 4, v{m+3}""")
    for tl in range(7):
        R0 = R_ + 8 * tl
        for k2 in range(2):
            for hf in range(2):
                r = R0 + 4 * k2 + 2 * hf
                if tl < 6: a.e(f"ds_read_b64_tr_b16 v[{r}:{r+1}], v{m+3} offset:{(32*k2+4*hf)*224 + 64*(tl>>1) + 8*(tl&1)}")
                else: a.e(f"ds_read_b64_tr_b16 v[{r}:{r+1}], v{m+4} offset:{(32*k2+4*hf)*224}")
    for r in range(4): a.e(f"v_mov_b32 v{ON+r}, 0x3f803f80")
    a.e(f"""
    s_mul_i32 s53, s49, {GU_SLICE}
    s_lshl_b32 s54, s51, 10
    s_add_u32 s53, s53, s54
    s_add_u32 s53, s53, {WGU_OFF}
    s_lshl_b32 s54, s50, 12
    s_add_u32 s56, s53, s54
    s_add_u32 s56, s56, {240*1024}
    s_lshl_b32 s54, s50, 13
    s_add_u32 s53, s53, s54
    s_lshl_b32 s54, s48, 9
    s_add_u32 s54, s54, {CS_OFF}
    v_and_b32 v{m+5}, 12, v{vl}
    v_lshl_add_u32 v{m+5}, v{m+5}, 1, v{m+2}
    v_lshlrev_b32 v{m+5}, 2, v{m+5}
    v_lshlrev_b32 v{m+6}, 2, v{vl}
    """)
    for tl in range(7):
        R0 = R_ + 8 * tl
        a.e(f"s_waitcnt lgkmcnt({min(15, 4*(6-tl))})")
        if tl < 6:
            a.e(f"""s_add_u32 s57, s53, {(tl>>1)*80*1024 + (tl&1)*2048}
            s_add_u32 s58, s57, 4096
            buffer_store_dwordx4 {vr(R0)}, v{m+1}, {sr(SWS)}, s57 offen sc1
            buffer_store_dwordx4 {vr(R0+4)}, v{m+1}, {sr(SWS)}, s58 offen sc1""")
        else:
            a.e(f"""buffer_store_dwordx4 {vr(R0)}, v{m+1}, {sr(SWS)}, s56 offen sc1
            buffer_store_dwordx4 {vr(R0+4)}, v{m+1}, {sr(SWS)}, s56 offen offset:2048 sc1""")
        c = CC + 4 * tl
        a.e(f"v_mfma_f32_16x16x32_bf16 {vr(c)}, {vr(ON)}, {vr(R0)}, 0")
        a.e(f"v_mfma_f32_16x16x32_bf16 {vr(c)}, {vr(ON)}, {vr(R0+4)}, {vr(c)}")
    a.e(f"""s_mul_i32 s55, s51, 10
    s_add_u32 s55, s55, s50
    s_lshl_b32 s55, s55, 2
    s_lshl_b32 s56, s49, 7
    s_add_u32 s55, s55, s56
    s_add_u32 s{RT}, s55, {RF_GU}
    s_mov_b64 exec, 0xffff""")
    for tl in range(7):
        c = CC + 4 * tl
        if tl < 6: a.e(f"buffer_store_dword v{c}, v{m+5}, {sr(SWS)}, s54 offen offset:{128*(tl>>1) + 16*(tl&1)} sc1")
        else: a.e(f"buffer_store_dword v{c}, v{m+6}, {sr(SWS)}, s54 offen offset:384 sc1")
    a.e(f"s_mov_b64 exec, -1\ns_branch {Ld}\n{LB}:")
    r_decB(a)
    a.e(f"""
    v_mul_u32_u24 v{m+3}, 320, v{m}
    v_add_u32 v{m+3}, s47, v{m+3}
    v_lshl_add_u32 v{m+4}, v{m+2}, 3, v{m+3}
    v_lshl_add_u32 v{m+3}, v{m+2}, 4, v{m+3}""")
    for s2 in range(2):
        for Tt in range(5):
            base = f"v{m+3}" if Tt < 4 else f"v{m+4}"
            co = 160 * s2 + (64 * (Tt >> 1) + 8 * (Tt & 1) if Tt < 4 else 128)
            for hf in range(2):
                r = R_ + 20 * s2 + 4 * Tt + 2 * hf
                a.e(f"ds_read_b64_tr_b16 v[{r}:{r+1}], {base} offset:{4*hf*320 + co}")
    a.e(f"""
    s_lshl_b32 s53, s50, 1
    s_mul_i32 s53, s53, s51
    s_add_u32 s53, s53, s49
    s_mul_i32 s53, s53, 5120
    s_mov_b32 s54, {WD_OFF}
    s_cmp_eq_u32 s52, 1
    s_cselect_b32 s54, {WO_OFF}, s54
    s_cselect_b32 s57, 7, 8
    s_mov_b32 s58, {RF_WD}
    s_cselect_b32 s58, {RF_WO}, s58
    s_add_u32 s53, s53, s54
    s_add_u32 s54, s53, 4096
    s_mul_i32 s55, s51, 5120
    s_add_u32 s56, s54, s55
    s_add_u32 s55, s53, s55
    s_lshl_b32 s57, s50, s57
    s_add_u32 s57, s57, s58
    s_lshl_b32 s58, s49, 2
    s_add_u32 s{RT}, s57, s58
    """)
    for s2 in range(2):
        a.e(f"s_waitcnt lgkmcnt({10*(1-s2)})")
        for Tt in range(5):
            r = R_ + 20 * s2 + 4 * Tt
            if Tt < 4: a.e(f"buffer_store_dwordx4 {vr(r)}, v{m+1}, {sr(SWS)}, s{53+2*s2} offen offset:{1024*Tt} sc1")
            else: a.e(f"buffer_store_dwordx4 {vr(r)}, v{m+1}, {sr(SWS)}, s{54+2*s2} offen sc1")
    a.e(f"{Ld}:")

def gen_ph1(a, C, L_end, L_j1):
    L_spare = a.label("spare"); L_comp = a.label("comp"); L_rt = a.label("rt"); L_rdone = a.label("rdone"); L_nort = a.label("nort")
    rotmode = getattr(C, "rot", 2); touch = getattr(C, "touch", 0); pro = getattr(C, "pro", 2); cpf = getattr(C, "cpf", 1)
    stamp(a, C, 0)
    a.e(f"""
    s_load_dwordx4 s[40:43], s[0:1], 0
    s_load_dwordx2 s[44:45], s[0:1], 72
    s_getpc_b64 s[56:57]
    s_cmp_ge_u32 s2, 256
    s_cbranch_scc1 {L_end}
    v_lshrrev_b32 v1, 6, v0
    v_and_b32 v2, 63, v0
    s_lshr_b32 s{TT}, s2, 3
    v_readfirstlane_b32 s{WAVE}, v1
    """)
    if cpf:
        a.e(f"""
        s_lshl_b32 s46, s{TT}, 11
        v_lshlrev_b32 v3, 8, v1
        v_lshl_add_u32 v3, v2, 7, v3
        v_add_u32 v3, s46, v3
        v_min_u32 v3, L_end-L_start-64, v3
        s_mov_b64 exec, 3
        global_load_dword v255, v3, s[56:57]
        s_mov_b64 exec, -1
        """)
    a.e(f"""
    s_load_dwordx2 s[30:31], s[0:1], 16
    s_load_dwordx8 s[32:39], s[0:1], 32
    s_and_b32 s{G}, s2, 7
    s_and_b32 s46, s{TT}, 1              ; m
    s_lshr_b32 s47, s{TT}, 1             ; c
    s_and_b32 s48, s{WAVE}, 3            ; lw / w
    """)
    if rotmode == 1:
        a.e(f"""
        s_mul_i32 s49, s46, 5
        s_add_u32 s49, s49, s47
        s_add_u32 s49, s49, s{G}             ; 0..26
        s_mul_i32 s50, s49, 26
        s_lshr_b32 s50, s50, 8
        s_mul_i32 s50, s50, 10
        s_sub_u32 s49, s49, s50              ; rot 0..9""")
    elif rotmode == 2: a.e(f"s_mov_b32 s49, s{G}")
    elif rotmode == 3: a.e(f"s_mul_i32 s49, s46, 2\ns_add_u32 s49, s49, s{G}")
    else: a.e("s_mov_b32 s49, 0")
    a.e(f"""
    s_lshl_b32 s50, s{G}, 8
    s_lshl_b32 s51, s46, 7
    s_add_u32 s50, s50, s51
    s_lshl_b32 s51, s48, 5
    s_add_u32 s50, s50, s51
    s_mul_i32 s50, s50, 1280
    s_lshl_b32 s51, s49, 7               ; kc*128
    s_and_b32 s52, s48, 1
    s_mul_i32 s52, s52, {32*3840}
    s_lshl_b32 s53, s47, 8
    s_add_u32 s52, s52, s53
    s_lshr_b32 s53, s48, 1
    s_lshl_b32 s53, s53, 7
    s_add_u32 s52, s52, s53              ; w base
    s_mul_i32 s53, s49, {64*3840}
    s_lshl_b32 s54, s48, 12              ; lw*4096
    v_lshrrev_b32 v3, 3, v2              ; rho
    v_and_b32 v12, 7, v2                 ; sigma
    v_lshrrev_b32 v13, 1, v3
    v_xor_b32 v14, v12, v13
    v_xor_b32 v15, 4, v14
    v_mul_u32_u24 v16, 1280, v3
    v_lshl_add_u32 v4, v14, 4, v16
    v_lshl_add_u32 v5, v15, 4, v16
    v_add_u32 v6, {2*(8*1280-1024)}, v4
    v_add_u32 v7, {3*(8*1280-1024)}, v5
    v_add_u32 v5, {1*(8*1280-1024)}, v5
    v_and_b32 v13, 2, v3
    v_xor_b32 v14, v12, v13
    v_xor_b32 v15, 4, v14
    v_mul_u32_u24 v16, 3840, v3
    v_lshl_add_u32 v8, v14, 4, v16
    v_lshl_add_u32 v9, v15, 4, v16
    v_add_u32 v10, {2*(8*3840-1024)}, v8
    v_add_u32 v11, {3*(8*3840-1024)}, v9
    v_add_u32 v9, {1*(8*3840-1024)}, v9
    s_getreg_b32 s{XCC}, hwreg(HW_REG_XCC_ID)
    s_and_b32 s{XCC}, s{XCC}, 15
    s_mov_b32 s{MODE}, 1
    s_mov_b32 s{SX+2}, {T*D*2}
    s_mov_b32 s{SX+3}, 0x20000
    s_mov_b32 s{SWQ+2}, {D*1920*2}
    s_mov_b32 s{SWQ+3}, 0x20000
    s_mov_b32 s{SWS+2}, {WS_BYTES}
    s_mov_b32 s{SWS+3}, 0x20000
    s_mov_b32 s{SOUT+2}, {T*D*2}
    s_mov_b32 s{SOUT+3}, 0x20000
    s_mov_b32 s{SRS+2}, {D*D*2}
    s_mov_b32 s{SRS+3}, 0x20000
    s_mov_b32 s56, 0
    s_cmp_ge_u32 s{TT}, 30
    s_cselect_b32 s57, 0, s{WAVE}        ; >=4 : loader
    s_waitcnt lgkmcnt(0)
    s_load_dword s{TAG}, s[44:45], {EPOCH}
    s_mov_b32 s{SX}, s40
    s_and_b32 s{SX+1}, s41, 0xffff
    s_mov_b32 s{SWQ}, s42
    s_and_b32 s{SWQ+1}, s43, 0xffff
    s_mov_b32 s{SWS}, s44
    s_and_b32 s{SWS+1}, s45, 0xffff
    s_mov_b32 s{SOUT}, s38
    s_and_b32 s{SOUT+1}, s39, 0xffff
    s_mov_b32 s{SRS}, s30
    s_and_b32 s{SRS+1}, s31, 0xffff
    """)
    stamp(a, C, 1)
    a.e(f"""
    s_cmp_lt_u32 s57, 4
    s_cbranch_scc1 {L_comp}
    """)
    Ll = a.label("ldl"); Lnb = a.label("ldnb")
    a.e(f"""{Ll}:
    s_mov_b32 m0, s54
    s_add_u32 s55, s50, s51""")
    if getattr(C, "nodma", 0): a.e("s_cmp_ge_u32 s56, 4\ns_cbranch_scc1 L_skipdma")
    for q in range(4): a.e(f"buffer_load_dwordx4 v{4+q}, {sr(SX)}, s55 offen offset:{1024*q} lds")
    a.e(f"s_add_u32 m0, s54, 16384\ns_add_u32 s55, s52, s53")
    for q in range(4): a.e(f"buffer_load_dwordx4 v{8+q}, {sr(SWQ)}, s55 offen offset:{1024*q} lds")
    a.e(f"""L_skipdma:
    s_add_u32 s51, s51, 128
    s_add_u32 s53, s53, {64*3840}
    s_cmp_ge_u32 s51, 1280
    s_cselect_b32 s51, 0, s51
    s_cselect_b32 s53, 0, s53
    s_add_u32 s54, s54, 32768
    s_and_b32 s54, s54, 0x1ffff
    s_add_u32 s56, s56, 1
    """)
    a.e(f"""s_cmp_lt_u32 s56, {pro}
    s_cbranch_scc1 {Ll}
    s_cmp_eq_u32 s56, 10
    s_cbranch_scc1 {Lnb}
    s_waitcnt vmcnt({8*(pro-1)})
    s_barrier
    s_branch {Ll}
    {Lnb}:
    s_waitcnt lgkmcnt(0)
    s_add_u32 s{TAG}, s{TAG}, 1
    s_mul_i32 s{TAG}, s{TAG}, {TAGC}""")
    stamp(a, C, 3)
    for n in range(10 - pro, 10): a.e(f"s_waitcnt vmcnt({8*(9-n)})\ns_barrier")
    a.e(f"s_branch {L_j1}")
    a.e(f"{L_comp}:")
    Ls2 = a.label("sp2"); Ls3 = a.label("sp3")
    a.e(f"s_cmp_ge_u32 s{WAVE}, 4\ns_cbranch_scc1 {Ls2}")
    stats_issue(a)
    if touch:
        a.e(f"""
        v_min_u32 v22, 59, v2
        v_lshlrev_b32 v22, 7, v22
        s_mul_i32 s58, s{TT}, 7680
        s_add_u32 s59, s49, s{WAVE}""")
        for k in range(3):
            if k == 2: a.e(f"s_cmp_ge_u32 s{WAVE}, 2\ns_cselect_b32 s59, s49, s59")
            a.e(f"""s_cmp_ge_u32 s59, 10
            s_cselect_b32 s55, 10, 0
            s_sub_u32 s59, s59, s55
            s_mul_i32 s55, s59, {64*3840}
            s_add_u32 s55, s55, s58
            buffer_load_dword v254, v22, {sr(SWQ)}, s55 offen{" sc1" if touch == 2 else ""}
            s_add_u32 s59, s59, 4""")
    ONES = 16; ACC = 32; CS = 96; FR = 112
    for r in range(4): a.e(f"v_mov_b32 v{ONES+r}, 0x3f803f80")
    for r in range(ACC, CS + 8, 2): a.e(f"v_mov_b64 v[{r}:{r+1}], 0")
    a.e(f"""
    s_lshr_b32 s49, s{WAVE}, 1           ; wt
    s_and_b32 s50, s{WAVE}, 1            ; wf
    v_and_b32 v3, 15, v2                 ; tau
    v_lshrrev_b32 v4, 4, v2              ; q4 / gamma
    v_lshrrev_b32 v5, 1, v3
    v_xor_b32 v5, v5, v4
    v_lshlrev_b32 v6, 7, v3
    s_lshl_b32 s51, s49, 13
    v_add_u32 v6, s51, v6
    v_lshl_add_u32 v8, v5, 4, v6         ; ax[0]
    v_xor_b32 v9, 64, v8                 ; ax[1]
    v_bfe_u32 v5, v2, 2, 2               ; r
    v_lshl_add_u32 v6, v4, 3, v5
    v_lshlrev_b32 v6, 7, v6              ; row*128
    v_and_b32 v7, 1, v2
    v_lshl_add_u32 v6, v7, 3, v6
    s_lshl_b32 s51, s50, 13
    s_add_u32 s51, s51, 16384
    v_add_u32 v6, s51, v6
    v_and_b32 v5, 2, v5
    v_and_b32 v7, 1, v4
    v_lshl_add_u32 v5, v7, 2, v5         ; sw
    v_bfe_u32 v7, v2, 1, 1
    v_xor_b32 v5, v5, v7
    s_lshl_b32 s51, s49, 2
    v_xor_b32 v5, s51, v5
    v_lshl_add_u32 v10, v5, 4, v6
    v_xor_b32 v11, 32, v10
    v_xor_b32 v12, 64, v10
    v_xor_b32 v13, 96, v10
    """)
    stats_finish(a, 3 if touch else 0)
    hello(a)
    a.e(f"s_cmp_ge_u32 s{TT}, 30\ns_cbranch_scc1 {Ls3}")
    def acc(fs, tt): return ACC + 16 * fs + 4 * tt
    def xf(st, tt): return FR + 32 * st + 4 * tt
    def wf(st, fs): return FR + 32 * st + 16 + 4 * fs
    def reads(i):
        if getattr(C, "nords", 0): return ["s_nop 0"] * 12
        so = ((i >> 1) & 1) * 32768; h = i & 1; st = i & 1
        out = []
        for q in range(4):
            for hf in range(2):
                r = wf(st, q) + 2 * hf
                out.append(f"ds_read_b64_tr_b16 v[{r}:{r+1}], v{10+q} offset:{so + (32*h+4*hf)*128}")
            out.append(f"ds_read_b128 {vr(xf(st,q))}, v{8+h} offset:{so + 2048*q}")
        return out
    def mm(st, fs, tt):
        if getattr(C, "nomfma", 0): return "s_nop 0"
        return f"v_mfma_f32_16x16x32_bf16 {vr(acc(fs,tt))}, {vr(wf(st,fs))}, {vr(xf(st,tt))}, {vr(acc(fs,tt))}"
    def cs(st, fs): return f"v_mfma_f32_16x16x32_bf16 {vr(CS+4*fs)}, {vr(wf(st,fs))}, {vr(ONES)}, {vr(CS+4*fs)}"
    def weave(main, fill, per=1, last=[]):
        out = []; k = 0
        for m in main:
            out.append(m)
            out += fill[k:k + per]; k += per
        out += fill[k:]
        if last:
            n = len(last)
            idx = [i for i, x in enumerate(out) if x.startswith("v_mfma") or x.startswith("s_nop")][-n:]
            for j in reversed(range(n)): out.insert(idx[j] + 1, last[j])
        return out
    flip = [f"v_xor_b32 v{r}, 0x10000, v{r}" for r in range(8, 14)]
    GR = 176
    cap = Asm()
    cap.e(f"""
    v_lshlrev_b32 v15, 3, v3
    s_lshl_b32 s51, s{G}, 2
    s_lshl_b32 s52, s46, 1
    s_add_u32 s52, s52, s49              ; blkl
    s_add_u32 s51, s51, s52              ; blk
    s_lshl_b32 s53, s51, 9
    s_add_u32 s53, s53, {ST1}""")
    cap.e(f"""
    v_lshlrev_b32 v20, 4, v4             ; exchange: q4*16
    s_lshl_b32 s56, s{WAVE}, 7
    s_add_u32 s56, s56, {X_LDS}
    v_add_u32 v21, s56, v20
    v_xor_b32 v22, 256, v21""")
    pre0 = [x.text for x in cap.ins]
    gl = [f"buffer_load_dwordx2 v[{GR+2*tt}:{GR+2*tt+1}], v15, {sr(SWS)}, s53 offen offset:{128*tt} sc1" for tt in range(4)]
    a.e(pre0)
    a.e(f"s_mov_b32 s44, 4")
    a.e("s_barrier")
    stamp(a, C, 2)
    a.e(reads(0))
    Lk = a.label("k1loop")
    a.e(f"{Lk}:")
    for i in range(4):
        st = i & 1
        a.e("s_waitcnt lgkmcnt(0)")
        main = [cs(st, 0), cs(st, 1)] + [mm(st, fs, tt) for fs in range(4) for tt in range(4)]
        if i & 1:
            a.e(main[0]); main = main[1:]
            a.e("s_barrier")
        a.e(weave(main, reads((i + 1) & 3), last=flip if i == 2 else []))
        if i == 0:
            a.e(["s_cmp_lg_u32 s44, 1", "s_cbranch_scc1 L_nogl"] + gl + ["L_nogl:"])
    a.e(f"s_sub_u32 s44, s44, 1\ns_cmp_lg_u32 s44, 0\ns_cbranch_scc1 {Lk}")
    cap = Asm()
    cap.e(f"""
    v_lshlrev_b32 v14, 1, v4
    v_and_b32 v14, 2, v14
    v_lshrrev_b32 v20, 1, v4
    v_or_b32 v14, v14, v20               ; perm(q4)
    v_lshlrev_b32 v14, 10, v14
    v_lshl_add_u32 v14, v3, 4, v14
    s_lshl_b32 s54, s47, 1
    s_add_u32 s54, s54, s50              ; unit
    s_lshl_b32 s55, s54, 2
    s_add_u32 s55, s55, s52
    s_lshl_b32 s55, s55, 2
    s_lshl_b32 s56, s{G}, 9
    s_add_u32 s55, s55, s56
    s_add_u32 s55, s55, {F1}             ; flag F1
    s_lshl_b32 s54, s54, 13
    s_lshl_b32 s56, s49, 12
    s_add_u32 s54, s54, s56
    s_xor_b32 s56, s54, 4096
    s_mul_i32 s57, s51, {QKV_BLK}
    s_add_u32 s57, s57, {QKV_OFF}
    s_add_u32 s40, s54, s57
    s_add_u32 s41, s56, s57
    s_mov_b32 s59, {f32bits(20**-0.5 * math.log2(math.e))}
    s_cmp_lt_u32 s47, 5
    s_cselect_b32 s59, s59, 1.0
    """)
    pre1 = [x.text for x in cap.ins]
    a.e("s_waitcnt lgkmcnt(0)")
    main = [cs(0, 0), cs(0, 1)] + [mm(0, fs, tt) for fs in range(4) for tt in range(4)]
    a.e(weave(main, reads(1) + [f"ds_write_b128 v21, {vr(CS)}", f"ds_write_b128 v21, {vr(CS+4)} offset:64"]))
    a.e("s_waitcnt lgkmcnt(0)")
    main = [cs(1, 1)] + [mm(1, fs, tt) for fs in range(4) for tt in range(4)]
    a.e([cs(1, 0), "s_barrier"])
    r2 = [f"ds_read_b128 {vr(CS+8)}, v22", f"ds_read_b128 {vr(CS+12)}, v22 offset:64"] + reads(2)
    fill = []
    for k in range(15): fill += [r2[k] if k < 14 else ""] + (pre1[2*k:2*k+2] + ["", ""])[:2]
    a.e(weave(main, fill, per=3))
    a.e("s_waitcnt lgkmcnt(12)")
    a.e([cs(1, 2), cs(1, 3)])
    a.e("s_waitcnt lgkmcnt(0)")
    main = [cs(0, k) for k in range(4)] + [mm(0, fs, tt) for fs in range(4) for tt in range(4)]
    a.e(weave(main[:12], reads(3)))
    Lg = a.label("gr"); Lgo = a.label("grok")
    a.e(f"""s_mov_b32 s44, {SPIN}
    {Lg}:
    s_waitcnt vmcnt(0)
    v_xor_b32 v186, v{GR+1}, v{GR+3}
    v_xor_b32 v187, v{GR+5}, v{GR+7}
    v_xor_b32 v188, s{TAG}, v{GR+1}
    v_xor_b32 v189, s{TAG}, v{GR+5}
    v_or3_b32 v186, v186, v187, v188
    v_or_b32 v186, v186, v189
    v_cmp_ne_u32 vcc, 0, v186
    s_cmp_eq_u64 vcc, 0
    s_cbranch_scc1 {Lgo}""")
    a.e(gl)
    a.e(f"""s_sub_u32 s44, s44, 1
    s_cbranch_scc0 {Lg}
    {Lgo}:""")
    fill = []
    for tt in range(4): fill += [f"v_and_b32 v{GR+2*tt+1}, 0xffff0000, v{GR+2*tt}"]
    for tt in range(4): fill += [f"v_rcp_f32 v{GR+2*tt+1}, v{GR+2*tt+1}", f"v_lshlrev_b32 v{GR+2*tt}, 16, v{GR+2*tt}"]
    for tt in range(4): fill += [f"v_mul_f32 v{GR+2*tt+1}, s59, v{GR+2*tt+1}"]
    a.e(weave(main[12:], fill, per=3))
    a.e("s_waitcnt lgkmcnt(0)")
    a.e([cs(1, k) for k in range(4)])
    stamp(a, C, 3)
    O = 192
    def epi(u):
        sp, tt = divmod(u, 4)
        g = GR + 2 * tt; o = O + 4 * u; out = []
        for fs in (2 * sp, 2 * sp + 1):
            c = acc(fs, tt)
            for e in (0, 2):
                out.append(f"v_pk_fma_f32 v[{c+e}:{c+e+1}], v[{CS+4*fs+e}:{CS+4*fs+e+1}], v[{g}:{g+1}], v[{c+e}:{c+e+1}] op_sel_hi:[1,0,1]")
        for fs in (2 * sp, 2 * sp + 1):
            c = acc(fs, tt)
            for e in (0, 2):
                out.append(f"v_pk_mul_f32 v[{c+e}:{c+e+1}], v[{c+e}:{c+e+1}], v[{g}:{g+1}] op_sel:[0,1] op_sel_hi:[1,1]")
        for fs in (2 * sp, 2 * sp + 1):
            c = acc(fs, tt)
            for e in (0, 2):
                out.append(f"v_cvt_pk_bf16_f32 v{o+2*(fs&1)+e//2}, v{c+e}, v{c+e+1}")
        return out
    def swp(u):
        o = O + 4 * u
        return [f"v_permlane16_swap_b32 v{o}, v{o+2}", f"v_permlane16_swap_b32 v{o+1}, v{o+3}"]
    def sto(u): return f"buffer_store_dwordx4 {vr(O+4*u)}, v14, {sr(SWS)}, s{40+u//4} offen offset:{256*(u&3)} sc1"
    def mmu(u):
        sp, tt = divmod(u, 4)
        return [mm(1, 2 * sp, tt), mm(1, 2 * sp + 1, tt)]
    a.e(mmu(0) + mmu(1) + mmu(2) + mmu(3))
    for u in range(8):
        e = epi(u)
        if u > 0: e = e[:2] + swp(u - 1) + e[2:4] + [sto(u - 1)] + e[4:]
        if u + 4 < 8:
            m = mmu(u + 4)
            e = [m[0]] + e[:6] + [m[1]] + e[6:]
        a.e(e)
    a.e(swp(7) + [sto(7)])
    stamp(a, C, 9)
    a.e(f"s_branch {L_j1}")
    a.e(f"""{Ls2}:
    s_waitcnt lgkmcnt(0)
    s_add_u32 s{TAG}, s{TAG}, 1
    s_mul_i32 s{TAG}, s{TAG}, {TAGC}
    {Ls3}:""")
    a.e(f"""
    s_lshl_b32 s46, s{G}, 1
    s_add_u32 s46, s46, s{TT}
    s_sub_u32 s46, s46, 30
    s_lshl_b32 s46, s46, 3
    s_add_u32 s{RT}, s46, s{WAVE}
    s_mul_i32 s47, s{WAVE}, 14336
    s_call_b64 s[0:1], L_rissue""")
    a.e("s_waitcnt vmcnt(0)")
    a.e(f"""s_call_b64 s[0:1], L_rfinish""")
    publish(a, RT, 27, force_sc1=True)
    stamp(a, C, 4)
def gen_rsubs(a):
    a.e("L_rissue:")
    r_issue(a, 2, 232)
    a.e("s_setpc_b64 s[0:1]\nL_rfinish:")
    r_finish(a, 2, 64)
    a.e("s_nop 1\ns_setpc_b64 s[0:1]")
```

```python
from pc import *
from ph1 import RT, R_LDS, X_LDS
ARR = 8192 + 64
KF0, KF1, KS, VF0, VF1, VS = [i * ARR for i in range(6)]
AUX = 6 * ARR
WO_LDS = 57344
CTL = X_LDS + 1024
NEG = 0xf149f2ca
def gen_ph2(a, C):
    QT, ODD8, CB, NT, SQ, SH = 40, 41, 42, 43, 44, 45
    WS_, WL, WE = 9, 10, 58
    L_nop = a.label("a_np")
    a.e(f"""
    s_sub_u32 s{QT}, 7, s{WAVE}
    s_sub_u32 s59, s{WAVE}, 4
    s_cmp_lt_u32 s{WAVE}, 4
    s_cselect_b32 s{QT}, s{QT}, s59       ; q tile
    s_and_b32 s59, s{TT}, 1
    s_lshl_b32 s{ODD8}, s59, 3
    s_lshr_b32 s60, s{TT}, 1
    s_mul_i32 s60, s60, 5                 ; 5P
    s_mul_i32 s61, s59, 3
    s_add_u32 s61, s61, s60               ; F0 chunk
    s_add_u32 s62, s60, 2
    s_lshl_b32 s59, s59, 1
    s_add_u32 s{CB}, s60, s59
    s_lshl_b32 s61, s61, 10
    s_lshl_b32 s62, s62, 10
    v_lshrrev_b32 v3, 2, v2
    v_min_u32 v3, 8, v3
    v_mul_u32_u24 v4, 86, v3
    v_lshrrev_b32 v4, 8, v4               ; section
    v_mul_u32_u24 v5, 77, v4
    v_add3_u32 v5, v5, v3, s{CB}          ; chunk
    v_lshrrev_b32 v5, 3, v5
    v_and_b32 v6, 3, v2
    v_lshl_add_u32 v5, v5, 2, v6
    v_lshlrev_b32 v5, 2, v5
    s_lshl_b32 s59, s{G}, 9
    v_cmp_eq_u32 vcc, 0, v4
    v_add_u32 v6, 160, v5
    v_cndmask_b32 v30, v5, v6, vcc
    s_add_u32 s{SH}, s59, {FH - 512}
    s_add_u32 s59, s59, {F1}
    v_add_u32 v5, s59, v5
    v_subrev_u32 v6, 36, v2
    v_min_u32 v6, 19, v6
    s_lshr_b32 s59, s{TT}, 3
    s_lshl_b32 s59, s59, 7
    s_add_u32 s59, s59, {RF_WO}
    v_lshl_add_u32 v6, v6, 2, s59
    v_cmp_gt_u32 vcc, 36, v2
    v_cndmask_b32 v224, v6, v5, vcc
    """)
    a.e(f"""
    v_and_b32 v4, 31, v2                  ; tau
    v_lshrrev_b32 v5, 5, v2               ; g2
    v_lshlrev_b32 v3, 4, v2               ; lane*16
    v_xor_b32 v31, 512, v3                ; (lane^32)*16
    v_lshlrev_b32 v6, 4, v4
    v_lshl_add_u32 v7, v5, 10, v6         ; tau*16 + g2*1024
    s_and_b32 s59, s{WAVE}, 3
    s_lshl_b32 s60, s{G}, 2
    s_add_u32 s63, s60, s59
    s_mul_i32 s63, s63, {QKV_BLK}
    s_lshr_b32 s8, s{WAVE}, 2             ; 0: K 1: V
    s_mul_i32 s9, s8, {80*1024}
    s_add_u32 s63, s63, s9
    s_add_u32 s63, s63, {QKV_OFF + 80*1024}
    s_add_u32 s56, s63, s61               ; F0 src
    s_add_u32 s57, s63, s62               ; S src
    s_mul_i32 s8, s8, {3*ARR}
    s_lshl_b32 s59, s59, 10
    s_sub_u32 s8, s8, s59
    s_add_u32 s8, s8, {4096 + 3072}
    s_lshr_b32 s59, s{QT}, 1
    s_add_u32 s60, s60, s59               ; q block
    s_and_b32 s59, s{QT}, 1
    s_lshl_b32 s59, s59, 9
    s_mul_i32 s63, s60, {QKV_BLK}
    s_add_u32 s63, s63, s59
    s_add_u32 s63, s63, {QKV_OFF}
    s_add_u32 s11, s63, s61
    s_add_u32 s63, s63, s62
    s_add_u32 s63, s63, s{ODD8}
    s_mul_i32 s{SQ}, s60, {O_BLK}
    s_add_u32 s{SQ}, s{SQ}, s59
    s_add_u32 s{SQ}, s{SQ}, {O_OFF}       ; O base
    s_lshr_b32 s46, s{TT}, 2
    s_mul_i32 s46, s46, {100*1024}
    s_mul_i32 s47, s{WAVE}, {9*1024}
    s_add_u32 s{WS_}, s46, s47
    s_lshr_b32 s46, s{WAVE}, 2
    s_mul_i32 s46, s46, {14*1024}
    s_add_u32 s{WS_}, s{WS_}, s46
    s_add_u32 s{WS_}, s{WS_}, {WO_OFF}
    s_add_u32 s{WL}, s47, {WO_LDS}
    s_add_u32 s{WE}, s{WL}, {9*1024}
    """)
    MK = 32; MC = 48; NM = 64; KFR = 80; S = [128, 144]; VFR = [160, 168]; PB = 176; OA = 184; MX = 28
    a.e(f"""
    v_mov_b32 v228, 0x3f803f80
    v_mov_b32 v229, 0x3f803f80
    v_mov_b32 v230, 0x3f803f80
    v_mov_b32 v231, 0x3f803f80
    s_lshl_b32 s59, s{WAVE}, 10
    s_min_u32 s59, s59, 4096
    v_add_u32 v19, s59, v3
    v_mul_u32_u24 v20, {ARR}, v5
    v_add_u32 v20, v20, v6
    s_add_u32 s59, s{ODD8}, {KS}
    v_add_u32 v21, s59, v6
    v_bfe_u32 v23, v2, 2, 2
    v_lshl_add_u32 v23, v5, 2, v23
    v_lshlrev_b32 v23, 4, v23             ; (4g+r)*16
    v_and_b32 v24, 1, v2
    v_mul_u32_u24 v24, {ARR}, v24
    v_bfe_u32 v25, v2, 1, 1
    v_lshl_add_u32 v24, v25, 3, v24
    v_add_u32 v24, {VF0}, v24
    s_add_u32 s59, s{ODD8}, {VS}
    v_mov_b32 v26, s59
    v_and_b32 v25, 16, v2
    v_cmp_eq_u32 vcc, 0, v25
    v_cndmask_b32 v22, v26, v24, vcc
    v_and_b32 v25, 19, v2
    v_cmp_lt_u32 vcc, 16, v25
    v_mov_b32 v26, {AUX}
    v_cndmask_b32 v22, v22, v26, vcc
    v_add_u32 v22, v22, v23
    v_cndmask_b32_e64 v23, -1, 0, vcc
    v_lshlrev_b32 v24, 2, v5
    v_sub_u32 v24, v4, v24                ; tau - 4g
    v_mov_b32 v25, {NEG}
    """)
    for r in range(16):
        row = 8 * (r >> 2) + (r & 3)
        a.e(f"v_cmp_le_i32 s[{46+2*(r&3)}:{47+2*(r&3)}], {row}, v24")
        if (r & 3) == 3:
            for q in range(4): a.e(f"v_cndmask_b32_e64 v{MK+r-3+q}, v25, 0, s[{46+2*q}:{47+2*q}]")
    for r in range(0, 16, 2): a.e(f"v_mov_b64 v[{OA+r}:{OA+r+1}], 0")
    a.e(f"""
    v_mov_b32 v27, {NEG}
    s_sub_u32 s59, 15, s{QT}
    s_lshl_b32 s59, s59, 9
    s_add_u32 s{NT}, s{QT}, 1
    s_cmp_lt_u32 s{WAVE}, 4
    s_cbranch_scc1 L_a_pub
    s_setprio {getattr(C, 'prio', 1)}
    s_cmp_lg_u32 s{WAVE}, 7
    s_cbranch_scc1 {L_nop}
    """)
    hello_addr(a, 225, 2, 46)
    get_mode(a, C, 225, 46, 226, 47)
    stamp(a, C, 5)
    a.e(f"""
    v_mov_b32 v8, s{MODE}
    v_mov_b32 v9, 0
    v_mov_b32 v10, {CTL}
    ds_write_b64 v10, v[8:9]
    s_mul_i32 s46, s{MODE}, {FH-F1}
    v_add_u32 v225, s46, v224
    v_cmp_gt_u32 vcc, 36, v2
    v_cndmask_b32 v224, v224, v225, vcc
    s_mov_b32 s46, 0
    """)
    poll(a, 224, 46, 226, 47, inv=False)
    a.e(f"""s_waitcnt lgkmcnt(0)
    s_branch {L_nop}
    L_a_pub:
    s_cmp_ge_u32 s{TT}, 30
    s_cbranch_scc1 {L_nop}
""")
    a.e(f"""v_mov_b32 v226, s{TAG}
    s_add_u32 s54, s55, {FH-F1}
    s_waitcnt vmcnt(0)
    s_mov_b64 exec, 1
    buffer_store_dword v226, off, {sr(SWS)}, s55
    buffer_store_dword v226, off, {sr(SWS)}, s54 sc1
    s_mov_b64 exec, -1""")
    stamp(a, C, 4)
    a.e(f"{L_nop}:")
    stamp(a, C, 10)
    a.e("s_barrier")
    stamp(a, C, 6)
    a.e(f"""
    s_mov_b32 m0, s8
    buffer_load_dwordx4 v31, {sr(SWS)}, s56 offen sc1 lds
    s_add_u32 m0, s8, {ARR - 1024}
    buffer_load_dwordx4 v31, {sr(SWS)}, s56 offen offset:1024 sc1 lds
    s_add_u32 m0, s8, {2*ARR}
    buffer_load_dwordx4 v31, {sr(SWS)}, s57 offen sc1 lds
    buffer_load_dwordx4 v[8:11], v7, {sr(SWS)}, s11 offen sc1
    buffer_load_dwordx2 v[12:13], v6, {sr(SWS)}, s63 offen sc1
    s_cmp_eq_u32 s{WAVE}, 4
    s_cselect_b32 s11, s{G}, 0
    s_cmp_eq_u32 s11, 0
    s_cbranch_scc1 L_a_nfl
    buffer_load_dword v29, v30, {sr(SWS)}, s{SH} offen sc1
    L_a_nfl:
    v_mov_b32 v14, {CTL}
    ds_read_b32 v15, v14
    ds_write_b128 v19, v[228:231] offset:{AUX}
    s_waitcnt lgkmcnt(0)
    v_readfirstlane_b32 s{MODE}, v15
    v_cmp_gt_u32 vcc, 32, v2""")
    stamp(a, C, 7)
    a.e(f"""
    s_waitcnt vmcnt(0)
    v_cndmask_b32 v12, 0, v12, vcc
    v_cndmask_b32 v13, 0, v13, vcc
    s_barrier
    """)
    stamp(a, C, 11)
    L_nh = a.label("a_nh")
    a.e(f"""s_cmp_eq_u32 s11, 0
    s_cbranch_scc1 {L_nh}""")
    poll(a, 30, SH, 29, 63, inv=False, pre=True)
    stamp(a, C, 5)
    a.e(f"""s_mul_i32 s63, s{G}, {4*QKV_BLK}
    s_add_u32 s63, s63, {QKV_OFF - 4*QKV_BLK + 80*1024}
    s_add_u32 s56, s63, s61
    s_add_u32 s57, s63, s62""")
    for kv in range(2):
        for b in range(4):
            o = b * QKV_BLK + kv * 80 * 1024
            d = kv * 3 * ARR + b * 1024
            a.e(f"""s_add_u32 s63, s56, {o}
            s_mov_b32 m0, {d}
            s_add_u32 s60, s57, {o}
            buffer_load_dwordx4 v3, {sr(SWS)}, s63 offen sc1 lds
            s_mov_b32 m0, {d + ARR - 1024}
            buffer_load_dwordx4 v3, {sr(SWS)}, s63 offen offset:1024 sc1 lds
            s_mov_b32 m0, {d + 2*ARR}
            buffer_load_dwordx4 v3, {sr(SWS)}, s60 offen sc1 lds""")
    a.e(f"{L_nh}:\ns_mov_b32 s8, 0")
    L_chunk = a.label("a_chunk")
    a.e(f"""{L_chunk}:
    v_add_u32 v14, s59, v20
    v_add_u32 v15, s59, v21
    v_and_b32 v26, s59, v23
    v_add_u32 v26, v26, v22""")
    def kf(t): return KFR + 6 * t
    def kread(t): return [f"ds_read_b128 {vr(kf(t))}, v14 offset:{512*t}", f"ds_read_b64 v[{kf(t)+4}:{kf(t)+5}], v15 offset:{512*t}"]
    def qk(t, c):
        k = kf(t); sb = S[t & 1]
        return [f"v_mfma_f32_32x32x16_bf16 {vr(sb,16)}, {vr(k)}, v[8:11], {c}",
                f"v_mfma_f32_32x32x8_bf16 {vr(sb,16)}, v[{k+4}:{k+5}], v[12:13], {vr(sb,16)}"]
    def mx(p): return [f"v_max3_f32 v{MX+((r>>1)&1)}, v{S[p]+r}, v{S[p]+r+1}, v{MX+((r>>1)&1)}" for r in range(0, 16, 2)]
    wod = [f"s_mov_b32 m0, s{WL}", f"s_add_u32 s{WL}, s{WL}, 1024", f"buffer_load_dwordx4 v3, {sr(SWS)}, s{WS_} offen sc1 lds", f"s_add_u32 s{WS_}, s{WS_}, 1024"]
    if getattr(C, "nowo", 0): wod = []
    a.e(kread(0) + kread(1) + kread(2))
    a.e(f"v_mov_b32 v{MX}, v27\nv_mov_b32 v{MX+1}, v27\ns_waitcnt lgkmcnt(4)")
    a.e(qk(0, vr(MK, 16)))
    a.e(wod)
    T1 = [a.label("a_t1"), a.label("a_t1")]; L_p1d = a.label("a_p1d")
    for t in range(7):
        a.e(f"s_waitcnt lgkmcnt({2 if t + 2 < 8 else 0})")
        a.e(f"s_cmp_eq_u32 s{NT}, {t+1}\ns_cbranch_scc1 {T1[t&1]}")
        q = qk(t + 1, "0"); m = mx(t & 1)
        if getattr(C, "sch", 0): a.e(q + (kread(t + 3) if t + 3 < 8 else []) + wod + m)
        else: a.e([q[0]] + (kread(t + 3) if t + 3 < 8 else []) + wod + m[:4] + [q[1]] + m[4:])
    def vread(t):
        b = VFR[t & 1]
        return [f"ds_read_b64_tr_b16 v[{b+4*u+2*hf}:{b+4*u+2*hf+1}], v26 offset:{512*t + 256*u + 128*hf}" for u in range(2) for hf in range(2)]
    a.e(f"{T1[1]}:")
    a.e(vread(0) + mx(1))
    a.e(f"s_branch {L_p1d}\n{T1[0]}:")
    a.e(vread(0) + mx(0))
    a.e(f"{L_p1d}:")
    a.e(f"""
    v_max_f32 v{MX}, v{MX}, v{MX+1}
    v_mov_b32 v{MX+1}, v{MX}
    v_permlane32_swap_b32 v{MX}, v{MX+1}
    v_max_f32 v{MX}, v{MX}, v{MX+1}
    v_sub_f32 v{MX+1}, v27, v{MX}
    v_mov_b32 v27, v{MX}
    v_exp_f32 v16, v{MX+1}
    v_sub_f32 v18, 0, v{MX}
    """)
    for r in range(0, 16, 2): a.e(f"v_pk_add_f32 v[{MC+r}:{MC+r+1}], v[{MK+r}:{MK+r+1}], v[18:19] op_sel_hi:[1,0]")
    q = qk(0, vr(MC, 16))
    a.e(q[0])
    for r in range(0, 16, 2): a.e(f"v_pk_mov_b32 v[{NM+r}:{NM+r+1}], v[18:19], v[18:19] op_sel:[0,0]")
    a.e(q[1])
    for r in range(0, 14, 2): a.e(f"v_pk_mul_f32 v[{OA+r}:{OA+r+1}], v[{OA+r}:{OA+r+1}], v[16:17] op_sel_hi:[1,0]")
    def P1(p): return f"v_mfma_f32_32x32x16_bf16 {vr(OA,16)}, {vr(VFR[p])}, {vr(PB)}, {vr(OA,16)}"
    def P2(p): return f"v_mfma_f32_32x32x16_bf16 {vr(OA,16)}, {vr(VFR[p]+4)}, {vr(PB+4)}, {vr(OA,16)}"
    def slot(t, p, last):
        sb = S[p]
        E = [f"v_exp_f32 v{sb+r}, v{sb+r}" for r in range(16)]
        Cv = [f"v_cvt_pk_bf16_f32 v{PB+q}, v{sb+2*q}, v{sb+2*q+1}" for q in range(8)]
        q = qk(t + 1, vr(NM, 16)) if not last else ["", ""]
        vrd = vread(t + 1) if not last else []
        if getattr(C, "sch", 0) == 1:
            out = q + vrd + E[0:4] + [Cv[0], E[4], Cv[1], E[5], E[6], E[7]] + [Cv[2], E[8], Cv[3], E[9], E[10], E[11]]
            out += [Cv[4], E[12], Cv[5], E[13], E[14], E[15], Cv[6], Cv[7], f"s_waitcnt lgkmcnt({0 if last else 4})", P1(p)]
            return out
        if getattr(C, "sch", 0) == 2:
            out = E[0:6] + q + vrd + [Cv[0], Cv[1], E[6], E[7]] + [Cv[2], E[8], Cv[3], E[9], E[10], E[11]]
            out += [Cv[4], E[12], Cv[5], E[13], E[14], E[15], Cv[6], Cv[7], f"s_waitcnt lgkmcnt({0 if last else 4})", P1(p)]
            return out
        out = E[0:4] + [q[0]] + vrd[:2] + [Cv[0], E[4], Cv[1], E[5], E[6], E[7]] + [q[1]] + vrd[2:] + [Cv[2], E[8], Cv[3], E[9], E[10], E[11]]
        out += [f"s_waitcnt lgkmcnt({0 if last else 4})", P1(p), Cv[4], E[12], Cv[5], E[13], E[14], E[15], Cv[6], Cv[7]]
        return out
    T2 = [a.label("a_t2"), a.label("a_t2")]; L_p2d = a.label("a_p2d")
    a.e(f"s_cmp_eq_u32 s{NT}, 1\ns_cbranch_scc1 {T2[0]}")
    for t in range(7):
        a.e(slot(t, t & 1, False))
        if t < 6: a.e([f"s_cmp_eq_u32 s{NT}, {t+2}", "s_nop 0", P2(t & 1), f"s_cbranch_scc1 {T2[(t+1)&1]}"])
        else: a.e(P2(t & 1))
    a.e(f"{T2[1]}:")
    a.e(slot(0, 1, True) + [P2(1)])
    a.e(f"s_branch {L_p2d}\n{T2[0]}:")
    a.e(slot(0, 0, True) + [P2(0)])
    L_done = a.label("a_done"); L_n6 = a.label("a_n6"); L_hw = a.label("a_hw")
    a.e(f"""{L_p2d}:
    s_cmp_lg_u32 s8, 0
    s_cbranch_scc1 {L_done}
    s_mov_b32 s8, 1
    v_mov_b32 v14, {CTL}
    v_mov_b32 v15, 1""")
    stamp(a, C, 12)
    a.e(f"""s_sub_u32 s48, s{WAVE}, 5
    s_lshl_b32 s{RT}, s48, 8
    s_add_u32 s{RT}, s{RT}, s2
    s_add_u32 s{RT}, s{RT}, {9999 if getattr(C, "nor", 0) else 128}
    s_cmp_gt_u32 s48, 1
    s_cselect_b32 s{RT}, 9999, s{RT}
    s_cmp_ge_u32 s{RT}, 616
    s_cbranch_scc1 L_a_nri
    s_mul_i32 s47, s48, 14336
    s_add_u32 s47, s47, {R_LDS}
    s_call_b64 s[0:1], L_rissue
    L_a_nri:""")
    a.e(f"""
    s_cmp_eq_u32 s{G}, 0
    s_cbranch_scc1 {L_done}""")
    for r in range(0, 16, 2): a.e(f"v_pk_add_f32 v[{MK+r}:{MK+r+1}], v[24:25], v[{MK+r}:{MK+r+1}] op_sel:[1,0] neg_lo:[0,1] neg_hi:[0,1]")
    a.e(f"""
    s_lshl_b32 s59, s{QT}, 9
    s_sub_u32 s{NT}, 8, s{QT}
    s_mov_b32 s63, {SPIN*16}
    s_cmp_eq_u32 s11, 0
    s_cbranch_scc1 {L_hw}
    s_waitcnt vmcnt({0 if getattr(C, "nowo", 0) else 1})
    ds_write_b32 v14, v15 offset:4
    s_lshl_b32 s60, s{G}, 7
    s_lshl_b32 s63, s{TT}, 2
    s_add_u32 s60, s60, s63
    s_add_u32 s60, s60, {FHD}
    v_mov_b32 v29, s{TAG}
    s_mov_b64 exec, 1
    buffer_store_dword v29, off, {sr(SWS)}, s60 sc1
    s_mov_b64 exec, -1""")
    stamp(a, C, 9)
    a.e(f"""
    s_branch {L_chunk}
    {L_hw}:
    ds_read_b32 v15, v14 offset:4
    s_waitcnt lgkmcnt(0)
    v_readfirstlane_b32 s60, v15
    s_cmp_lg_u32 s60, 0
    s_cbranch_scc1 {L_chunk}
    s_sleep 1
    s_sub_u32 s63, s63, 1
    s_cbranch_scc0 {L_hw}
    s_branch {L_chunk}
    {L_done}:""")
    stamp(a, C, 13)
    a.e(f"""
    s_add_u32 s56, s{SQ}, s61
    s_add_u32 s57, s{SQ}, s62
    s_add_u32 s57, s57, s{ODD8}
    s_lshl_b32 s59, s{G}, 10
    s_lshr_b32 s60, s{QT}, 1
    s_lshl_b32 s60, s60, 8
    s_add_u32 s59, s59, s60
    s_lshl_b32 s60, s{TT}, 3
    s_add_u32 s59, s59, s60
    s_and_b32 s60, s{QT}, 1
    s_lshl_b32 s60, s60, 2
    s_add_u32 s59, s59, s60
    s_add_u32 s59, s59, {F2}
    v_rcp_f32 v28, v{OA+12}
    """)
    for r in range(0, 12, 2): a.e(f"v_pk_mul_f32 v[{OA+r}:{OA+r+1}], v[{OA+r}:{OA+r+1}], v[28:29] op_sel_hi:[1,0]")
    for q in range(6): a.e(f"v_cvt_pk_bf16_f32 v{PB+q}, v{OA+2*q}, v{OA+2*q+1}")
    a.e(f"""
    buffer_store_dwordx4 {vr(PB)}, v7, {sr(SWS)}, s56 offen
    s_mov_b32 exec_hi, 0
    buffer_store_dwordx2 v[{PB+4}:{PB+5}], v6, {sr(SWS)}, s57 offen
    s_mov_b32 exec_hi, -1
    """)
    publish(a, 59, 28)
    a.e("s_setprio 0")
    stamp(a, C, 14)
    Lw = a.label("a_wl"); Lwd = a.label("a_wd")
    a.e(f"{Lw}:\ns_cmp_ge_u32 s{WL}, s{WE}\ns_cbranch_scc1 {Lwd}")
    a.e(wod if wod else f"s_add_u32 s{WL}, s{WL}, 1024")
    a.e(f"s_waitcnt vmcnt(0)\ns_branch {Lw}\n{Lwd}:")
    a.e("s_barrier")
    L_nr = a.label("a_nr")
    a.e(f"""s_cmp_ge_u32 s{RT}, 616
    s_cbranch_scc1 {L_nr}
    s_call_b64 s[0:1], L_rfinish""")
    publish(a, RT, 28, force_sc1=True)
    a.e(f"{L_nr}:")
```

```python
from pc import *
from ph1 import X_LDS, bf16r
from ph2 import WO_LDS
RED = 131072
CS_LDS = X_LDS + 2048
NQ = 39
def cap(f):
    c = Asm(); f(c); return [x.text for x in c.ins]
def stats_combine(a, vin, vt, scale, want):
    s, q = vin, vin + 1
    a.e(f"""
    v_add_f32 v{s}, v{vin}, v{vin+2}
    v_add_f32 v{q}, v{vin+1}, v{vin+3}
    v_mov_b32 v{vt}, v{s}
    v_mov_b32 v{vt+1}, v{q}
    v_permlane16_swap_b32 v{s}, v{vt}
    v_permlane16_swap_b32 v{q}, v{vt+1}
    v_add_f32 v{s}, v{s}, v{vt}
    v_add_f32 v{q}, v{q}, v{vt+1}
    v_mov_b32 v{vt}, v{s}
    v_mov_b32 v{vt+1}, v{q}
    v_permlane32_swap_b32 v{s}, v{vt}
    v_permlane32_swap_b32 v{q}, v{vt+1}
    v_add_f32 v{s}, v{s}, v{vt}
    v_add_f32 v{q}, v{q}, v{vt+1}""")
    if scale: a.e(f"v_mul_f32 v{s}, {f32bits(1.0/640)}, v{s}")
    if want == "r2":
        a.e(f"""v_mul_f32 v{q}, {f32bits(1.0/640)}, v{q}
        v_fma_f32 v{q}, -v{s}, v{s}, v{q}
        v_max_f32 v{q}, 0, v{q}""")
        bf16r(a, q)
        a.e(f"v_add_f32 v{q}, {f32bits(1e-5)}, v{q}")
        bf16r(a, q)
        a.e(f"v_sqrt_f32 v{q}, v{q}")
        bf16r(a, q)
        a.e(f"v_rcp_f32 v{q}, v{q}\nv_mul_f32 v{q}, v{q}, v{q}")

def gen_ph3(a, C, L_loader):
    a.e(f"""
    s_and_b32 s40, s{TT}, 3               ; blk local
    s_lshr_b32 s41, s{TT}, 2              ; slice
    s_and_b32 s42, s{WAVE}, 3             ; tq
    s_lshr_b32 s43, s{WAVE}, 2            ; kh
    s_lshl_b32 s44, s{G}, 2
    s_add_u32 s44, s44, s40               ; blk
    s_mul_i32 s45, s44, {QKV_BLK}
    s_lshl_b32 s46, s42, 8
    s_add_u32 s45, s45, s46
    s_add_u32 s45, s45, {QKV_OFF}
    s_mul_i32 s46, s43, 40960
    s_add_u32 s46, s46, s45
    s_add_u32 s46, s46, {O_CH*1024}       ; X base
    v_and_b32 v4, 15, v2
    v_lshrrev_b32 v5, 4, v2
    v_lshlrev_b32 v6, 4, v4
    v_lshl_add_u32 v6, v5, 10, v6
    s_mul_i32 s47, s43, {36*1024}
    s_add_u32 s47, s47, {WO_LDS}
    v_add_u32 v8, s47, v3
    s_mul_i32 s47, s43, {14*1024}
    v_add_u32 v9, s47, v3
    s_mul_i32 s47, s42, 5120
    s_add_u32 s47, s47, {RED}
    v_add_u32 v15, s47, v3
    s_cmp_ge_u32 s{WAVE}, 4
    s_cbranch_scc1 L_p3_hi
    s_mul_i32 s47, s41, {100*1024}
    s_lshr_b32 s48, s42, 1
    s_mul_i32 s48, s48, {36*1024}
    s_add_u32 s47, s47, s48
    s_mul_i32 s48, s42, {7*1024}
    s_add_u32 s47, s47, s48
    s_add_u32 s47, s47, {WO_OFF + 36*1024}
    s_mov_b32 m0, s48
    s_add_u32 s49, s47, 4096""")
    for q in range(4): a.e(f"buffer_load_dwordx4 v3, {sr(SWS)}, s47 offen offset:{1024*q} sc1 lds")
    a.e("s_add_u32 m0, s48, 4096")
    for q in range(3): a.e(f"buffer_load_dwordx4 v3, {sr(SWS)}, s49 offen offset:{1024*q} sc1 lds")
    RES = 40
    a.e(f"""
    s_lshl_b32 s47, s44, 6
    s_lshl_b32 s48, s42, 4
    s_add_u32 s47, s47, s48
    s_mul_i32 s47, s47, 1280
    s_mul_i32 s48, s41, 160
    s_add_u32 s47, s47, s48
    v_mul_u32_u24 v10, 1280, v4
    v_lshl_add_u32 v11, v5, 3, v10
    v_lshl_add_u32 v10, v5, 4, v10
    buffer_load_dwordx4 {vr(RES)}, v10, {sr(SX)}, s47 offen
    buffer_load_dwordx4 {vr(RES+4)}, v10, {sr(SX)}, s47 offen offset:64
    buffer_load_dwordx2 v[{RES+8}:{RES+9}], v11, {sr(SX)}, s47 offen offset:128
    v_lshrrev_b32 v7, 1, v5
    v_lshlrev_b32 v7, 10, v7
    v_lshl_add_u32 v7, v4, 4, v7
    v_and_b32 v10, 1, v5
    v_lshl_add_u32 v7, v10, 3, v7
    v_lshlrev_b32 v12, 6, v4              ; tau*64
    s_mul_i32 s48, s41, 10240
    s_add_u32 s48, s48, s45
    s_add_u32 s48, s48, {H_CH*1024}
    s_add_u32 s49, s48, 4096
    s_add_u32 s50, s48, 8192
    s_mul_i32 s51, s42, {1024-256}
    s_add_u32 s51, s51, s45
    s_lshl_b32 s52, s41, 3
    s_add_u32 s51, s51, s52
    s_add_u32 s51, s51, {ST2_CH*1024}
    ; F3 flag [g][half][(blk&1)*32 + sl*4 + tq]
    s_lshl_b32 s52, s{G}, 9
    s_lshl_b32 s53, s40, 7
    s_add_u32 s52, s52, s53
    s_lshl_b32 s53, s41, 4
    s_add_u32 s52, s52, s53
    s_lshl_b32 s53, s42, 2
    s_add_u32 s52, s52, s53
    s_add_u32 s52, s52, {F3}
    s_waitcnt vmcnt(0)""")
    U = 104
    for q in range(10): a.e(f"v_lshlrev_b32 v{U+2*q}, 16, v{RES+q}\nv_and_b32 v{U+2*q+1}, 0xffff0000, v{RES+q}")
    if ALIAS:
        a.e(f"""s_cmp_eq_u32 s{G}, 7
        s_cbranch_scc1 L_p3_j2
        v_and_b32 v10, 3, v2
        v_lshlrev_b32 v10, 2, v10
        s_lshl_b32 s53, s{G}, 7
        s_lshl_b32 s54, s41, 4
        s_add_u32 s53, s53, s54
        s_add_u32 s53, s53, {FHD + 128}""")
        poll(a, 10, 53, 11, 54, inv=False)
    a.e(f"""s_branch L_p3_j2
    L_p3_hi:
    s_cmp_lg_u32 s{WAVE}, 7
    s_cbranch_scc1 L_p3_j2
    v_lshlrev_b32 v10, 2, v2
    s_lshl_b32 s47, s{G}, 10
    s_lshl_b32 s48, s40, 8
    s_add_u32 s47, s47, s48
    s_add_u32 s47, s47, {F2}""")
    poll(a, 10, 47, 11, 48)
    a.e("L_p3_j2:")
    stamp(a, C, 1)
    a.e("s_barrier")
    stamp(a, C, 2)
    XR = 64; ACC = 16; WR = 128; NW = 8; PD = 7
    for ks in range(10):
        a.e(f"buffer_load_dwordx4 {vr(XR+4*ks)}, v6, {sr(SWS)}, s46 offen sc1")
        if ks < 9: a.e("s_add_u32 s46, s46, 4096")
    def rd(i): return f"ds_read_b128 {vr(WR+4*(i%NW))}, " + (f"v8 offset:{1024*i}" if i < 36 else f"v9 offset:{1024*(i-36)}")
    for i in range(PD): a.e(rd(i))
    for i in range(50):
        ks, Tt = divmod(i, 5)
        if Tt == 0: a.e(f"s_waitcnt vmcnt({9-ks})")
        a.e(f"s_waitcnt lgkmcnt({min(PD, 50-i)-1})")
        c = vr(ACC + 4 * Tt)
        a.e(f"v_mfma_f32_16x16x32_bf16 {c}, {vr(WR+4*(i%NW))}, {vr(XR+4*ks)}, {c if ks else 0}")
        if i + PD < 50: a.e(rd(i + PD))
    stamp(a, C, 3)
    a.e(f"s_cmp_lt_u32 s{WAVE}, 4\ns_cbranch_scc1 L_p3_lo")
    for Tt in range(5): a.e(f"ds_write_b128 v15, {vr(ACC+4*Tt)} offset:{1024*Tt}")
    a.e(f"s_waitcnt lgkmcnt(0)\ns_barrier\ns_branch {L_loader}\nL_p3_lo:")
    for e in range(0, 20, 2): a.e(f"v_pk_add_f32 v[{U+e}:{U+e+1}], v[{U+e}:{U+e+1}], v[{ACC+e}:{ACC+e+1}]")
    a.e("s_barrier")
    for Tt in range(5): a.e(f"ds_read_b128 {vr(ACC+4*Tt)}, v15 offset:{1024*Tt}")
    O = 128
    for Tt in range(5):
        a.e(f"s_waitcnt lgkmcnt({4-Tt})")
        for e in (4 * Tt, 4 * Tt + 2):
            a.e(f"v_pk_add_f32 v[{U+e}:{U+e+1}], v[{U+e}:{U+e+1}], v[{ACC+e}:{ACC+e+1}]")
        for e in (4 * Tt, 4 * Tt + 2):
            a.e(f"v_cvt_pk_bf16_f32 v{O+e//2}, v{U+e}, v{U+e+1}")
        if Tt == 1: a.e(f"buffer_store_dwordx4 {vr(O)}, v6, {sr(SWS)}, s48 offen")
        if Tt == 3: a.e(f"buffer_store_dwordx4 {vr(O+4)}, v6, {sr(SWS)}, s49 offen")
    a.e(f"buffer_store_dwordx2 v[{O+8}:{O+9}], v7, {sr(SWS)}, s50 offen")
    a.e(f"v_pk_add_f32 v[56:57], v[{U}:{U+1}], v[{U+2}:{U+3}]\nv_pk_mul_f32 v[58:59], v[{U}:{U+1}], v[{U}:{U+1}]")
    for e in range(2, 20, 2):
        a.e(f"v_pk_fma_f32 v[58:59], v[{U+e}:{U+e+1}], v[{U+e}:{U+e+1}], v[58:59]")
        if e >= 4: a.e(f"v_pk_add_f32 v[56:57], v[56:57], v[{U+e}:{U+e+1}]")
    a.e("v_mov_b32 v52, v56\nv_mov_b32 v53, v58\nv_mov_b32 v54, v57\nv_mov_b32 v55, v59")
    stats_combine(a, 52, 56, False, "")
    a.e(f"""s_mov_b64 exec, 0xffff
    buffer_store_dwordx2 v[52:53], v12, {sr(SWS)}, s51 offen
    s_mov_b64 exec, -1""")
    stamp(a, C, 4)

class Plan:
    def __init__(s): s.items = {}; s.order = []
    def add(s, key, nq, src, first, last, gate=-2, strides=None):
        s.items[key] = dict(nq=nq, src=src, first=first, last=last, gate=gate, strides=strides); s.order.append(key)
    def run(s, nep, capq, busy0, lag=2, verbose=False):
        free_at = [-99] * NQ
        for q, b in busy0.items(): free_at[q] = b
        pend = list(s.order)
        sched = {}
        for b in range(-2, nep - 1):
            iss = []; used = 0
            k = 0; blocked = set()
            while k < len(pend):
                it = s.items[pend[k]]
                must = it["first"] <= b + 2
                if it["gate"] > b or pend[k][0] in blocked:
                    assert it["first"] > b + 1 or b < -1, ("gate too late", pend[k], b)
                    blocked.add(pend[k][0])
                    k += 1; continue
                if not must and used + it["nq"] > capq(b): break
                nq = it["nq"]
                cand = [q for q in range(NQ - nq + 1) if all(free_at[q + i] <= b for i in range(nq))]
                lo, hi = it.get("zone", (0, NQ))
                cand = [q for q in cand if lo <= q and q + nq <= hi and (q - lo) % nq == 0]
                if not cand:
                    assert it["first"] > b + 1, ("no space", pend[k], b)
                    blocked.add(pend[k][0])
                    k += 1; continue
                q = cand[0]
                for i in range(nq): free_at[q + i] = it["last"] + lag
                it["q"] = q; it["b"] = b
                iss.append(pend.pop(k)); used += nq
            sched[b] = iss
            if verbose: print(b, used, [(x, s.items[x]["q"]) for x in iss])
        assert not pend, pend
        return sched

def gen_ph345(a, C):
    L_loader = "L_loader45"
    gen_ph3(a, C, L_loader)
    SWG, SHX, SWD, SAX, SL1 = 40, 41, 42, 43, 44
    ep4 = []
    for k in range(0, 20, 2): ep4.append((0, [k, k + 1]))
    for p in (1, 2):
        for k in range(0, 20, 4): ep4.append((p, list(range(k, k + 4))))
    for k in (0, 8, 16): ep4.append((3, list(range(k, min(20, k + 8)))))
    E5 = len(ep4); NEP = E5 + 14
    do5 = C.upto >= 5
    if not do5: NEP = E5
    P = Plan()
    wkey = lambda p, ks: ("w", p, ks if p < 3 else ks // 2)
    wit = []; xit = []
    for e, (p, kl) in enumerate(ep4):
        for ks in kl:
            k = wkey(p, ks)
            if k not in [x[0] for x in wit]: wit.append((k, e, (p * 80 + ks * 4 if p < 3 else 240 + 2 * ks) * 1024))
            if p == 0: xit.append((("x", ks), e, ks * 4096))
    XZ = (NQ - 16, NQ) if True else None
    for k, e, off in xit:
        P.add(k, 2, (SHX, off), e, e, gate=-1, strides=QKV_BLK); P.items[k]["zone"] = (23, 39)
    for k, e, off in wit:
        P.add(k, 1, (SWG, off), e, e)
        if e < 12: P.items[k]["zone"] = (0, 23)
        else: P.items[k]["zone"] = (25, 39); P.items[k]["gate"] = 8
    J0 = [0, 16, 32, 46, 54]
    gate5 = {0: getattr(C, "g0", E5 - 3), 1: getattr(C, "g1", E5 - 3), 2: getattr(C, "g2", E5 + 4), 3: getattr(C, "g3", E5 + 8)}
    if do5:
        for e in range(14):
            P.add(("d", e), 5 if e < 13 else 3, (SWD, e * 20480), E5 + e, E5 + e); P.items[("d", e)]["zone"] = (0, 25)
            for s_ in range(2 if e < 13 else 1):
                j = 4 * e + 2 * s_
                p = max(i for i in range(4) if J0[i] <= j)
                P.add(("a", j), 2, (SAX, (ACT_CH[p] + 4 * (j - J0[p])) * 1024), E5 + e, E5 + e, gate=gate5[p]); P.items[("a", j)]["zone"] = (25, 39)
        P.items[("d", 13)]["nq"] = 5; P.items[("d", 13)]["nd"] = 3
    P.order.sort(key=lambda k: P.items[k]["first"])
    def dur(b):
        if b < 0: return 10000
        if b < E5:
            p, kl = ep4[b]; return len(kl) * (128 if p < 3 else 64)
        return 320
    rate = getattr(C, "rate", 52)
    busy0 = {q: -1 for q in range(RED // 4096, (RED + 20480) // 4096)}
    sched = P.run(NEP, lambda b: (dur(b) * rate / 4096 if b != -1 else 0), busy0, lag=getattr(C, "lag", 2), verbose=getattr(C, "verbose", 0))
    Q = lambda k: P.items[k]["q"] * 4096
    a.e(f"""
    s_and_b32 s40, s{TT}, 1               ; half
    s_lshr_b32 s41, s{TT}, 1              ; slice 0..15
    s_lshr_b32 s42, s{WAVE}, 1
    s_and_b32 s43, s{WAVE}, 1
    s_lshl_b32 s44, s40, 1
    s_add_u32 s44, s44, s42               ; blk local
    s_lshl_b32 s45, s{G}, 2
    s_add_u32 s45, s45, s44
    s_mul_i32 s45, s45, {QKV_BLK}
    s_add_u32 s45, s45, {QKV_OFF}
    s_lshl_b32 s46, s43, 11
    s_add_u32 s46, s46, s45
    s_add_u32 s46, s46, {ST2_CH*1024}
    s_lshl_b32 s47, s43, 9
    s_add_u32 s45, s45, s47
    s_lshl_b32 s48, s42, 12
    s_add_u32 s47, s47, s48
    v_add_u32 v64, s47, v6                ; X lds read base
    v_add_u32 v65, 0x10000, v64
    v_add_u32 v66, 0x20000, v64
    v_lshl_add_u32 v67, v5, 4, v12        ; tau*64+q4*16
    v_add_u32 v0, 0x10000, v3
    v_add_u32 v1, 0x20000, v3
    v_lshlrev_b32 v7, 5, v5
    v_add_u32 v7, {CS_LDS}, v7
    s_lshl_b32 s47, s41, 12
    s_add_u32 s53, s45, s47
    s_add_u32 s54, s53, {ACT_CH[1]*1024}
    s_add_u32 s53, s53, {ACT_CH[0]*1024}
    s_lshr_b32 s48, s41, 3
    s_sub_u32 s49, s41, s48
    s_add_u32 s48, s48, 14
    s_and_b32 s50, s41, 7
    s_cmp_eq_u32 s50, 7
    s_cselect_b32 s49, s48, s49
    s_lshl_b32 s49, s49, 12
    s_add_u32 s55, s45, s49
    s_add_u32 s55, s55, {ACT_CH[2]*1024}
    s_lshl_b32 s47, s41, 11
    s_add_u32 s56, s45, s47
    s_add_u32 s56, s56, {ACT_CH[3]*1024}
    ; F4 flag: [g][p][blk][sl*2+wv]
    s_lshl_b32 s57, s{G}, 11
    s_add_u32 s57, s57, {F4}
    s_and_b32 s58, s{TT}, 3
    s_lshl_b32 s58, s58, 7
    s_add_u32 s58, s58, s57
    s_lshl_b32 s47, s44, 7
    s_add_u32 s57, s57, s47
    s_lshl_b32 s47, s41, 3
    s_add_u32 s57, s57, s47
    s_lshl_b32 s47, s43, 2
    s_add_u32 s57, s57, s47
    """)
    publish(a, 52, 24)
    stamp(a, C, 5)
    a.e(f"""s_cmp_lg_u32 s{WAVE}, 0
    s_cbranch_scc1 L_p4_j3
    v_lshlrev_b32 v10, 2, v2
    s_lshl_b32 s47, s{G}, 9
    s_lshl_b32 s48, s40, 8
    s_add_u32 s47, s47, s48
    s_add_u32 s47, s47, {F3}""")
    poll(a, 10, 47, 11, 48)
    a.e("L_p4_j3:")
    stamp(a, C, 6)
    a.e("s_barrier")
    a.e(f"buffer_load_dwordx4 v[68:71], v67, {sr(SWS)}, s46 offen sc1\nbuffer_load_dwordx4 v[72:75], v67, {sr(SWS)}, s46 offen offset:1024 sc1")
    WB = [3, 0, 1]; XB = [64, 65, 66]; WR = 8; NWR = 4; CST = 24; ACCS = [32, 64]; XR = 96; NM = 4
    def lds(base, addr): return f"v{base[addr >> 16]} offset:{addr & 65535}"
    units = []
    for e, (p, kl) in enumerate(ep4):
        A = ACCS[p & 1]
        for ks in kl:
            nj = 4 if p < 3 else 2
            for j in range(nj):
                i = len(units); w = WR + 4 * (i % NWR)
                addr = Q(wkey(p, ks)) + (j if p < 3 else 2 * (ks & 1) + j) * 1024
                rds = []
                if p == 0 and j == 0:
                    for tt in range(2): rds.append(f"ds_read_b128 {vr(XR+8*ks+4*tt)}, {lds(XB, Q(('x', ks)) + 256*tt)}")
                rds.append(f"ds_read_b128 {vr(w)}, {lds(WB, addr)}")
                mf = []
                for tt in range(2):
                    c = vr(A + 8 * j + 4 * tt)
                    mf.append(f"v_mfma_f32_16x16x32_bf16 {c}, {vr(w)}, {vr(XR+8*ks+4*tt)}, {c if ks else 0}")
                units.append(dict(e=e, rds=rds, mf=mf, pd=NWR - 1, p=p, ks=ks, j=j))
    n4 = len(units)
    A5 = 96; F5 = [136, 164]; XB5 = [32, 33, 34]; WB5 = [35, 36, 37]
    if do5:
        for e in range(14):
            for s_ in range(2 if e < 13 else 1):
                i = len(units) - n4; f = F5[i & 1]
                rds = []
                xa = Q(("a", 4 * e + 2 * s_)); wa = Q(("d", e)) + s_ * 10240
                rds.append(f"ds_read_b128 {vr(f)}, {lds(XB5, xa)}")
                rds.append(f"ds_read_b128 {vr(f+8)}, {lds(WB5, wa)}")
                rds.append(f"ds_read_b128 {vr(f+4)}, {lds(XB5, xa + 256)}")
                for Tt in range(1, 5): rds.append(f"ds_read_b128 {vr(f+8+4*Tt)}, {lds(WB5, wa + 1024*Tt)}")
                mf = []
                for Tt in range(5):
                    for tt in range(2):
                        c = vr(A5 + 20 * tt + 4 * Tt)
                        mf.append(f"v_mfma_f32_16x16x32_bf16 {c}, {vr(f+8+4*Tt)}, {vr(f+4*tt)}, {c if i else 0}")
                units.append(dict(e=E5 + e, rds=rds, mf=mf, pd=1, p=5, ks=i, j=0))
    fills = {}
    def epi(p):
        A = ACCS[p & 1]; out = []
        if p == 3:
            out += ["v_lshrrev_b32 v40, 1, v7", f"v_add_u32 v40, {CS_LDS//2}, v40", "v_mbcnt_lo_u32_b32 v41, -1, 0", "v_mbcnt_hi_u32_b32 v41, -1, v41",
                    "v_lshrrev_b32 v42, 5, v41", "v_lshlrev_b32 v42, 10, v42", "v_and_b32 v43, 15, v41", "v_lshl_add_u32 v42, v43, 4, v42",
                    "v_bfe_u32 v43, v41, 4, 1", "v_lshl_add_u32 v42, v43, 3, v42"]
        for h in range(2 if p < 3 else 1):
            ad = f"v7 offset:{128*p + 16*h}" if p < 3 else "v40 offset:384"
            ad2 = f"v7 offset:{512 + 128*p + 16*h}" if p < 3 else "v40 offset:896"
            out += [("ds", f"ds_read_b128 {vr(CST)}, {ad}"), ("ds", f"ds_read_b128 {vr(CST+4)}, {ad2}"), ("gap", 6), ("dsw",)]
            for tt in range(2):
                Gr = A + 16 * h + 4 * tt; Ur = Gr + 8; O = A + 4 * tt
                out += [f"v_fmac_f32 v{Gr+e}, v{NM+tt}, v{CST+e}" for e in range(4)]
                out += [f"v_fmac_f32 v{Ur+e}, v{NM+tt}, v{CST+4+e}" for e in range(4)]
                out += [f"v_max_f32 v{Gr+e}, 0, v{Gr+e}" for e in range(4)]
                out += [f"v_mul_f32 v{Gr+e}, v{Gr+e}, v{Ur+e}" for e in range(4)]
                out += [f"v_cvt_pk_bf16_f32 v{O+2*h+q}, v{Gr+2*q}, v{Gr+2*q+1}" for q in range(2)]
                if h == 1: out.append(f"buffer_store_dwordx4 {vr(O)}, v6, {sr(SWS)}, s{53+p} offen offset:{256*tt}")
                if p == 3: out.append(f"buffer_store_dwordx2 v[{O}:{O+1}], v42, {sr(SWS)}, s56 offen offset:{256*tt}")
        return out
    def pub(p): return [("blk", cap2(lambda c: (publish(c, 57, CST), c.e("s_add_u32 s57, s57, 512"))))]
    def cap2(f):
        c = Asm(); c._lab = a._lab; f(c); a._lab = c._lab; return [x.text for x in c.ins]
    def poll_issue(ps):
        t = [f"v_mbcnt_lo_u32_b32 v{CST+1}, -1, 0", f"v_mbcnt_hi_u32_b32 v{CST+1}, -1, v{CST+1}"]
        if len(ps) == 2: t += [f"v_lshrrev_b32 v{CST+2}, 5, v{CST+1}", f"v_mul_u32_u24 v{CST+2}, {512-128}, v{CST+2}", f"v_lshl_add_u32 v{CST+1}, v{CST+1}, 2, v{CST+2}"]
        else: t += [f"v_and_b32 v{CST+1}, 31, v{CST+1}", f"v_lshlrev_b32 v{CST+1}, 2, v{CST+1}"]
        t += [f"s_add_u32 s47, s58, {512*ps[0]}", f"buffer_load_dword v{CST+2}, v{CST+1}, {sr(SWS)}, s47 offen sc1"]
        return t
    def poll_check(): return [("blk", cap2(lambda c: poll(c, CST + 1, 47, CST + 2, 48, pre=True)))]
    st = []
    for tt in range(2):
        st += cap(lambda c: stats_combine(c, 68 + 4 * tt, 76, True, ""))
        st += [f"v_cvt_pk_bf16_f32 v{NM+tt}, -v{68+4*tt}, -v{68+4*tt}", f"v_and_b32 v{NM+tt}, 0xffff0000, v{NM+tt}"]
    fills[30] = ["s_waitcnt vmcnt(0)"] + st
    for p in range(3):
        fills[80 * (p + 1) + 3] = epi(p)
        fills.setdefault(80 * (p + 1) + (60 if p < 2 else 36), []).extend(pub(p))
    first_unit = {}
    for i, u in enumerate(units): first_unit.setdefault(u["e"], i)
    pre_bar = {}
    if do5:
        fills[n4 + 1] = epi(3)
        fills[n4 + 5] = pub(3)
        s5 = cap(lambda c: c.e(f"""
        s_and_b32 s42, s{WAVE}, 1
        s_lshr_b32 s43, s{WAVE}, 1
        s_lshl_b32 s47, s42, 9
        s_lshl_b32 s48, s43, 12
        s_add_u32 s47, s47, s48
        v_add_u32 v32, s47, v6
        v_add_u32 v33, 0x10000, v32
        v_add_u32 v34, 0x20000, v32
        s_mul_i32 s47, s43, 5120
        v_add_u32 v35, s47, v3
        v_add_u32 v36, 0x10000, v35
        v_add_u32 v37, 0x20000, v35"""))
        fills[276].extend(s5)
        groups = {}
        for p in range(4): groups.setdefault(gate5[p], []).append(p)
        for g_, ps in groups.items():
            u0 = first_unit[g_]
            back = 14 if g_ <= E5 else 3
            fills.setdefault(u0 - back, []).extend(poll_issue(ps))
            pre_bar[g_] = poll_check()
    dsq = []
    cur = [-1]
    q = []
    def emit_reads(i):
        u = units[i]; out = []
        if u["e"] > cur[0]:
            cur[0] = u["e"]
            out.append(("bar", u["e"]))
        out += [("rd", i, r) for r in u["rds"]]
        return out
    def put(x):
        if isinstance(x, str): a.e(x); return
        if x[0] == "bar":
            if x[1] in pre_bar:
                assert not q, ("fill queue not empty at poll", x[1], q[:3])
                for y in pre_bar[x[1]]: put(y)
            a.e("s_barrier")
            if x[1] == 0: stamp(a, C, 7)
            if x[1] == E5: stamp(a, C, 9)
        elif x[0] == "rd": a.e(x[2]); dsq.append(x[1])
        elif x[0] == "ds": a.e(x[1]); dsq.append("c")
        elif x[0] == "dsw": waitds(lambda t: t == "c")
        elif x[0] == "blk": a.e(x[1])
    def waitds(pred):
        idx = max([k for k, t in enumerate(dsq) if pred(t)], default=-1)
        if idx >= 0:
            a.e(f"s_waitcnt lgkmcnt({min(15, len(dsq) - idx - 1)})")
            del dsq[:idx + 1]
    nxt = 0
    while nxt < units[0]["pd"]:
        for x in emit_reads(nxt): put(x)
        nxt += 1
    per = getattr(C, "per", 1)
    for i, u in enumerate(units):
        if i in fills: q.extend(fills[i])
        waitds(lambda t: t == i)
        post = []
        while nxt < len(units) and nxt <= i + units[nxt]["pd"] and (nxt <= i + u["pd"]):
            post += emit_reads(nxt); nxt += 1
        nm = len(u["mf"])
        for k, m in enumerate(u["mf"]):
            a.e(m)
            room = 2
            take = post[:1] if k < nm - 1 else post
            if take and take[0][0] == "bar": take = post[:2]
            post = post[len(take):]
            for x in take: put(x); room -= 1
            while room > 0 and q:
                x = q[0]
                if isinstance(x, tuple) and x[0] == "gap":
                    q[0] = ("gap", x[1] - 1)
                    if x[1] <= 1: q.pop(0)
                    break
                q.pop(0); put(x); room -= 1
        if i == n4 - 1: stamp(a, C, 8)
    if not do5:
        q.extend(epi(3) + pub(3))
    for x in q:
        if not (isinstance(x, tuple) and x[0] == "gap"): put(x)
    stamp(a, C, 10)
    if do5:
        RES = 40; U = 56; ST = 52
        a.e(f"""
        v_mbcnt_lo_u32_b32 v2, -1, 0
        v_mbcnt_hi_u32_b32 v2, -1, v2
        s_lshl_b32 s44, s42, 1
        s_add_u32 s44, s44, s43               ; tile
        s_and_b32 s45, s{TT}, 3
        s_lshl_b32 s46, s{G}, 2
        s_add_u32 s45, s45, s46               ; blk
        s_lshr_b32 s41, s{TT}, 2              ; slice
        s_mul_i32 s46, s45, {QKV_BLK}
        s_add_u32 s46, s46, {QKV_OFF}
        s_lshl_b32 s47, s44, 10
        s_add_u32 s47, s47, s46
        s_add_u32 s47, s47, {ST2_CH*1024}
        s_lshl_b32 s48, s44, 8
        s_add_u32 s46, s46, s48
        s_mul_i32 s48, s41, 10240
        s_add_u32 s48, s48, s46
        s_add_u32 s48, s48, {H_CH*1024}
        s_add_u32 s49, s48, 4096
        s_add_u32 s50, s48, 8192
        v_and_b32 v4, 15, v2
        v_lshrrev_b32 v5, 4, v2
        v_lshlrev_b32 v8, 6, v4
        v_lshl_add_u32 v8, v5, 4, v8
        v_mov_b32 v9, v42
        buffer_load_dwordx4 {vr(ST)}, v8, {sr(SWS)}, s47 offen sc1
        buffer_load_dwordx4 {vr(RES)}, v6, {sr(SWS)}, s48 offen sc1
        buffer_load_dwordx4 {vr(RES+4)}, v6, {sr(SWS)}, s49 offen sc1
        buffer_load_dwordx2 v[{RES+8}:{RES+9}], v9, {sr(SWS)}, s50 offen sc1
        s_mul_i32 s47, s{WAVE}, 5120
        v_add_u32 v10, s47, v3
        s_xor_b32 s47, s{WAVE}, 2
        s_mul_i32 s47, s47, 5120
        v_add_u32 v11, s47, v3
        s_barrier
        s_cmp_eq_u32 s43, 0
        s_cbranch_scc1 L_p5_k0""")
        for r in range(0, 20): a.e(f"v_swap_b32 v{A5+r}, v{A5+20+r}")
        a.e("L_p5_k0:")
        for Tt in range(5): a.e(f"ds_write_b128 v10, {vr(A5+20+4*Tt)} offset:{1024*Tt}")
        a.e(f"""
        s_lshl_b32 s47, s45, 6
        s_lshl_b32 s51, s44, 4
        s_add_u32 s47, s47, s51
        s_mul_i32 s47, s47, 1280
        s_mul_i32 s51, s41, 160
        s_add_u32 s47, s47, s51
        v_mul_u32_u24 v12, 1280, v4
        v_lshl_add_u32 v13, v5, 3, v12
        v_lshl_add_u32 v12, v5, 4, v12
        s_waitcnt lgkmcnt(0)
        s_barrier""")
        for Tt in range(5): a.e(f"ds_read_b128 {vr(A5+20+4*Tt)}, v11 offset:{1024*Tt}")
        a.e("s_waitcnt vmcnt(3)")
        stats_combine(a, ST, 14, True, "r2")
        a.e("s_waitcnt vmcnt(0)")
        for q_ in range(10): a.e(f"v_lshlrev_b32 v{U+2*q_}, 16, v{RES+q_}\nv_and_b32 v{U+2*q_+1}, 0xffff0000, v{RES+q_}")
        a.e("s_waitcnt lgkmcnt(0)")
        for e in range(0, 20, 2): a.e(f"v_pk_add_f32 v[{A5+e}:{A5+e+1}], v[{A5+e}:{A5+e+1}], v[{A5+20+e}:{A5+20+e+1}]")
        for e in range(0, 20, 2): a.e(f"v_pk_fma_f32 v[{U+e}:{U+e+1}], v[{A5+e}:{A5+e+1}], v[{ST}:{ST+1}], v[{U+e}:{U+e+1}] op_sel:[0,1,0] op_sel_hi:[1,1,1]")
        for q_ in range(10): a.e(f"v_cvt_pk_bf16_f32 v{RES+q_}, v{U+2*q_}, v{U+2*q_+1}")
        a.e(f"""buffer_store_dwordx4 {vr(RES)}, v12, {sr(SOUT)}, s47 offen
        buffer_store_dwordx4 {vr(RES+4)}, v12, {sr(SOUT)}, s47 offen offset:64
        buffer_store_dwordx2 v[{RES+8}:{RES+9}], v13, {sr(SOUT)}, s47 offen offset:128""")
        stamp(a, C, 11)
    a.e("s_branch L_fin")
    a.e(f"""{L_loader}:
    s_and_b32 s45, s{WAVE}, 3             ; lw
    s_lshl_b32 s{SL1}, s45, 10
    s_lshr_b32 s46, s{TT}, 1
    s_mul_i32 s{SWG}, s46, {GU_SLICE}
    s_add_u32 s{SWG}, s{SWG}, s{SL1}
    s_add_u32 s{SWG}, s{SWG}, {WGU_OFF}
    s_lshl_b32 s47, s{G}, 2
    s_and_b32 s48, s{TT}, 1
    s_lshl_b32 s48, s48, 1
    s_add_u32 s48, s48, s47
    s_mul_i32 s{SHX}, s48, {QKV_BLK}
    s_add_u32 s{SHX}, s{SHX}, s{SL1}
    s_add_u32 s{SHX}, s{SHX}, {QKV_OFF + H_CH*1024}
    s_lshr_b32 s48, s{TT}, 2
    s_mul_i32 s{SWD}, s48, {270*1024}
    s_add_u32 s{SWD}, s{SWD}, s{SL1}
    s_add_u32 s{SWD}, s{SWD}, {WD_OFF}
    s_and_b32 s48, s{TT}, 3
    s_add_u32 s48, s48, s47
    s_mul_i32 s{SAX}, s48, {QKV_BLK}
    s_add_u32 s{SAX}, s{SAX}, s{SL1}
    s_add_u32 s{SAX}, s{SAX}, {QKV_OFF}
    v_min_u32 v10, 19, v2
    v_lshlrev_b32 v10, 2, v10
    s_lshl_b32 s47, s46, 7
    s_add_u32 s47, s47, {RF_GU}""")
    poll(a, 10, 47, 11, 48, inv=False)
    a.e(f"""v_min_u32 v10, 53, v2
    v_lshlrev_b32 v10, 2, v10
    s_lshr_b32 s47, s{TT}, 3
    s_lshl_b32 s47, s47, 8
    s_add_u32 s47, s47, {RF_WD}""")
    poll(a, 10, 47, 11, 48, inv=False)
    stamp(a, C, 4)
    a.e(f"""s_lshr_b32 s47, s45, 1
    s_lshl_b32 s47, s47, 4
    s_add_u32 s47, s47, s46
    s_mul_i32 s47, s47, 5120
    s_and_b32 s48, s45, 1
    s_lshl_b32 s48, s48, 8
    s_add_u32 s47, s47, s48
    s_add_u32 s47, s47, {CS_OFF}
    s_add_u32 s48, s47, 4096
    v_lshlrev_b32 v10, 2, v2""")
    for kb in range(10): a.e(f"buffer_load_dword v{16+kb}, v10, {sr(SWS)}, s{47 + kb//8} offen offset:{512*(kb%8)} sc1")
    issued = []
    def issue(k):
        it = P.items[k]
        for i in range(it.get("nd", it["nq"])):
            off = it["src"][1] + i * (it["strides"] or 4096)
            a.e(f"s_add_u32 m0, s{SL1}, {(it['q']+i)*4096}\ns_add_u32 s49, s{it['src'][0]}, {off}\nbuffer_load_dwordx4 v3, {sr(SWS)}, s49 offen sc1 lds")
            issued.append(k)
    for k in sched[-2]: issue(k)
    a.e(f"s_waitcnt vmcnt({len(issued)})")
    for kb in range(1, 10): a.e(f"v_add_f32 v16, v16, v{16+kb}")
    a.e(f"""s_lshl_b32 s47, s45, 8
    s_add_u32 s47, s47, {CS_LDS}
    v_add_u32 v10, s47, v10
    ds_write_b32 v10, v16
    s_waitcnt lgkmcnt(0)""")
    stamp(a, C, 5)
    a.e("s_barrier")
    done = 0
    for b in range(-1, NEP - 1):
        for k in sched[b]: issue(k)
        idx = max([i for i, k in enumerate(issued) if P.items[k]["first"] <= b + 1], default=-1)
        if idx + 1 > done:
            n = len(issued) - idx - 1
            assert n < 64
            a.e(f"s_waitcnt vmcnt({n})"); done = idx + 1
        assert len(issued) - done < 60
        a.e("s_barrier")
    stamp(a, C, 10)
```

```python
import sys
from pc import *
from ph1 import *
KN = "sequential_preLN__sliding_block__glu_gated_reglu__prompt"
C = Ctx()
C.stamps = "--stamps" in sys.argv
C.upto = 9
for x in sys.argv[1:]:
    if x.startswith("--") and "=" in x:
        k, v = x[2:].split("="); setattr(C, k, int(v))
a = Asm()
L_end = "L_end"; L_fin = "L_fin"; L_j1 = "L_j1"
a.e("L_start:")
gen_ph1(a, C, L_end, L_j1)
a.e(f"{L_j1}:")
if C.upto >= 2:
    from ph2 import gen_ph2
    gen_ph2(a, C)
if C.upto >= 3:
    from ph3 import gen_ph345
    gen_ph345(a, C)
a.e(f"{L_fin}:")
Ln = a.label("noep"); Lp = a.label("epl"); Ld = a.label("epd")
a.e(f"""s_or_b32 s40, s2, s{WAVE}
s_cmp_lg_u32 s40, 0
s_cbranch_scc1 {Ln}""")
lane(a, 2)
a.e(f"""v_lshlrev_b32 v3, 4, v2
s_mov_b32 s41, {HELLO}
s_mov_b32 s42, {SPIN}
{Lp}:
buffer_load_dwordx4 v[4:7], v3, {sr(SWS)}, s41 offen sc1
s_waitcnt vmcnt(0)
v_subrev_u32 v4, s{TAG}, v4
v_subrev_u32 v5, s{TAG}, v5
v_subrev_u32 v6, s{TAG}, v6
v_subrev_u32 v7, s{TAG}, v7
v_or3_b32 v4, v4, v5, v6
v_or_b32 v4, v4, v7
v_cmp_lt_u32 vcc, 15, v4
s_cmp_eq_u64 vcc, 0
s_cbranch_scc1 {Ld}
s_sub_u32 s42, s42, 1
s_cbranch_scc0 {Lp}
{Ld}:
s_mul_i32 s41, s{TAG}, {pow(TAGC, -1, 1 << 32)}
v_mov_b32 v4, s41
s_mov_b32 s41, {EPOCH}
s_mov_b64 exec, 1
buffer_store_dword v4, off, {sr(SWS)}, s41 sc1
s_mov_b64 exec, -1
{Ln}:""")
if C.stamps:
    stamp(a, C, 15)
    a.e(f"""s_lshl_b32 s40, s2, 11
    s_lshl_b32 s41, s{WAVE}, 8
    s_add_u32 s40, s40, s41
    s_add_u32 s40, s40, {STAMP_OFF}
    s_waitcnt lgkmcnt(0)
    s_mov_b64 exec, 1""")
    for q in range(18):
        a.e(f"v_mov_b32 v2, s{64+2*q}\nv_mov_b32 v3, s{65+2*q}\nbuffer_store_dwordx2 v[2:3], off, {sr(SWS)}, s40 offset:{8*q}\ns_nop 1")
    a.e(f"v_mov_b32 v2, s{MODE}\nv_mov_b32 v3, {getattr(C, 'c0', 0) + 256 * getattr(C, 'c1', 15)}\nbuffer_store_dwordx2 v[2:3], off, {sr(SWS)}, s40 offset:160")
a.e(f"s_endpgm")
gen_rsubs(a)
a.e(f"{L_end}:\ns_endpgm")
out = [x for x in sys.argv[1:] if not x.startswith("--")][0]
hdr = open(f"cdna_kernels/{KN}.s.ref").read().split("; Override")[0].rstrip() if "--final" in sys.argv else "; generated"
open(out, "w").write(a.text(KN + "_kernel", hdr, "; @launch grid=(256,1,1) block=(512,1,1) lds=163840"))
print("instrs", len(a.out), "auto nops", a.nops)
```
